```python
import torch

def _softmax(x, axis=-1):
    return torch.softmax(x, dim=axis)
def _gelu(x):
    return torch.nn.functional.gelu(x, approximate="tanh")
def _silu(x):
    return torch.nn.functional.silu(x)
def _sigmoid(x):
    return torch.sigmoid(x)
def _layernorm(x, axis=-1, eps=1e-5):
    m = x.mean(dim=axis, keepdim=True)
    v = x.var(dim=axis, keepdim=True, unbiased=False)
    return (x - m) / torch.sqrt(v + eps)
def _scatter_add(tgt, idx, src, axis=0):
    return tgt.clone().index_add_(axis, idx, src)
def _segment_sum(src, seg, n):
    out = torch.zeros((n,) + src.shape[1:], dtype=src.dtype)
    return out.index_add_(0, seg, src)
def _pad(x, pw):
    flat = tuple(v for pair in reversed(pw) for v in pair)
    return torch.nn.functional.pad(x, flat)

kernel_name = 'standalone__weight_only_int_quip_2__prompt'

def setup_inputs():

    _w = (lambda a: (lambda t: t.to(torch.bfloat16) if t.is_floating_point() else t)(torch.as_tensor(a)))
    B, S, D, F = 1, 2048, 1024, 3584
    nbits = max(2, min(4, int(8)))
    G = 64 if 64 > 0 else D
    D = (D // G) * G
    ng = D // G
    qmax = 1 << nbits
    qw = torch.randint(0, qmax, (D, F)).to(torch.int32)
    zp = torch.randint(0, qmax, (ng, F)).to(float)
    sc = torch.abs((lambda *s: torch.randn(*s, dtype=torch.bfloat16) * 0.05)(ng, F)).to(float) * 0.1 + 0.02
    return {
        "x": _w((lambda *s: torch.randn(*s, dtype=torch.bfloat16) * 0.05)(B, S, D)),
        "qw": _w(qw),
        "scales": _w(sc),
        "zeros": _w(zp),
    }

def reference(x, qw, scales, zeros):
    B, S, D = x.shape
    ng, F = scales.shape
    G = D // ng
    s = (lambda x, n, axis: torch.repeat_interleave(x, n, dim=axis))(scales, G, axis=0)
    z = (lambda x, n, axis: torch.repeat_interleave(x, n, dim=axis))(zeros, G, axis=0)
    w = ((lambda x, dt: x.to(dt))(qw, x.dtype) - z) * s
    return torch.einsum("bsd,df->bsf", x, w)
```

```python
import re

INLINE_F = {"0.5","-0.5","1.0","-1.0","2.0","-2.0","4.0","-4.0"}
def _is_literal(tok):
    tok = tok.strip()
    if tok in INLINE_F: return False
    try:
        v = int(tok, 0)
    except ValueError:
        return tok.startswith("L_")
    return not (-16 <= v <= 64)

VOP3_ONLY = ("v_fma_f32","v_cvt_pk_bf16_f32","v_lshl_add_u32","v_mad_u32_u24","v_mul_lo_u32","v_add3_u32","v_lshl_or_b32",
             "v_and_or_b32","v_or3_b32","v_bfe_u32","v_add_lshl_u32","v_perm_b32","v_mfma_","v_pk_","v_fma_mix","v_accvgpr","v_readlane","v_writelane","v_xad_u32","v_bfi_b32","v_mad_i32_i24","v_mul_hi_u32","v_mbcnt")
SOPK = ("s_movk_i32","s_addk_i32","s_mulk_i32","s_cmpk_","s_getreg_b32","s_setreg_b32")
SOPP = ("s_nop","s_endpgm","s_branch","s_cbranch","s_barrier","s_waitcnt","s_setprio","s_sleep")

def isize(line):
    s = line.split(";")[0].strip()
    if not s or s.endswith(":") or s.startswith("."): return 0
    mn, _, rest = s.partition(" ")
    ops = [o.strip() for o in rest.split(",")] if rest else []
    if mn.startswith(("buffer_","global_","ds_","flat_")): return 8
    if mn.startswith(("s_load","s_memtime","s_memrealtime","s_buffer_load")): return 8
    if mn.startswith(SOPP) or mn.startswith(SOPK): return 4
    if mn.startswith("s_"):
        return 8 if any(_is_literal(o.split()[0]) for o in ops if o) else 4
    if mn.startswith("v_"):
        if mn.endswith("_e64") or mn.startswith(VOP3_ONLY): return 8
        if any(o.startswith("-") and not o[1:2].isdigit() for o in ops): return 8
        return 8 if any(_is_literal(o.split()[0]) for o in ops if o) else 4
    raise ValueError("unknown size: " + line)

class Asm:
    def __init__(self):
        self.lines = []
        self.off = 0
        self.align8 = True
        self.vm = []
        self.nmis = 0
    def raw(self, s):
        self.lines.append(s)
    def label(self, name, align=None):
        if align:
            while self.off % align:
                self._emit("s_nop 0")
        self.lines.append(name + ":")
    def _emit(self, s):
        self.lines.append("    " + s)
        self.off += isize(s)
    def __call__(self, s, tag=None):
        n = isize(s)
        if self.align8 and n == 8 and self.off % 8 == 4:
            j = len(self.lines) - 1
            prev = self.lines[j].strip()
            mn = prev.split(" ")[0]
            if prev and not prev.endswith(":") and mn.startswith("v_") and isize(prev) == 4 and not mn.endswith(("_e32","_e64")) and not mn.startswith(("v_permlane","v_readfirstlane","v_nop")):
                self.lines[j] = "    " + prev.replace(mn, mn + "_e64", 1)
                self.off += 4
            else:
                self._emit("s_nop 0"); self.nmis += 1
        self._emit(s)
        mn = s.split(" ")[0]
        if mn.startswith(("buffer_","global_")):
            self.vm.append(tag)
    def wait_vm(self, pred, extra=""):
        last = -1
        for i, t in enumerate(self.vm):
            if pred(t): last = i
        if last < 0:
            if extra: self("s_waitcnt " + extra)
            return None
        n = len(self.vm) - 1 - last
        assert n <= 63, n
        self(f"s_waitcnt vmcnt({n}) {extra}".strip())
        self.vm = self.vm[last+1:]
        return n
    def text(self):
        return "\n".join(self.lines) + "\n"
```

```python
import sys
from asmb import Asm

P = dict(MAP=0, DIAG=0, NOMFMA=0, NODEQ=0, NOA=0, NOB=0, NOSTORE=0, NOREAD=0, PRIO=1, RD0=0, RDS=1,
         PF=1, STFLAG="", BFLAG="", AFLAG="", NAME="standalone__weight_only_int_quip_2__prompt_kernel", NOWR=0)
for a in sys.argv[1:]:
    k, v = a.split("=")
    P[k] = int(v) if v.lstrip("-").isdigit() else v
globals().update(P)

M, K, N = 2048, 1024, 3584
NST = 16
A_SLOT = 32768
B_BASE = 131072
B_SLOT = 16384
LDS_BYTES = B_BASE + B_SLOT + 14336
T_BASE = B_BASE + B_SLOT
EP_RS = 240

a = Asm()
sX, sQ, sS, sZ, sO, sC, sD = 16, 20, 24, 28, 32, 36, 40
sW, sMT, sNT, sP = 44, 45, 46, 47
sT0, sT1, sT2, sT3 = 48, 49, 50, 51
sKA, sKA2, sKB, sM0B, sMASK = 52, 53, 54, 55, 56
sEX = 58
sSLOT, sCNT = 60, 61
sSTAMP = 64
def srd(n): return f"s[{n}:{n+3}]"
nstamp = [0]
def stamp():
    if not DIAG: return
    i = nstamp[0]; nstamp[0] += 1
    assert sSTAMP + 2*i + 1 <= 101
    a(f"s_memtime s[{sSTAMP+2*i}:{sSTAMP+2*i+1}]")

hdr = open("standalone__weight_only_int_quip_2__prompt.s.ref").read().split("; Override launch")[0]
out = hdr
out += f"; @launch grid=(256,1,1) block=(512,1,1) lds={LDS_BYTES}\n"
out += f""".amdgcn_target "amdgcn-amd-amdhsa--gfx950"
.text
.globl {NAME}
.p2align 8
.type {NAME},@function
{NAME}:
"""

a("s_cmp_ge_u32 s2, 256")
a("s_cbranch_scc1 L_end")
a("s_load_dwordx4 s[4:7], s[0:1], 0")
a("s_load_dwordx4 s[8:11], s[0:1], 16")
a("s_load_dwordx2 s[12:13], s[0:1], 32")
if DIAG:
    a("s_load_dwordx2 s[14:15], s[0:1], 48")
    a("s_memrealtime s[62:63]")
    stamp()
a("v_lshrrev_b32 v1, 6, v0")
a("v_and_b32 v0, 63, v0")
a(f"s_and_b32 {'s%d'%sT0}, s2, 7")
a(f"v_readfirstlane_b32 s{sW}, v1")
a(f"s_lshr_b32 s{sT1}, s2, 3")
if MAP == 0:
    a(f"s_and_b32 s{sT2}, s{sT1}, 3")
    a(f"s_lshl_b32 s{sNT}, s{sT0}, 2")
    a(f"s_add_u32 s{sNT}, s{sNT}, s{sT2}")
    a(f"s_lshr_b32 s{sMT}, s{sT1}, 2")
elif MAP == 1:
    a(f"s_and_b32 s{sT2}, s{sT0}, 1")
    a(f"s_lshl_b32 s{sT2}, s{sT2}, 2")
    a(f"s_and_b32 s{sMT}, s{sT1}, 3")
    a(f"s_add_u32 s{sMT}, s{sMT}, s{sT2}")
    a(f"s_lshr_b32 s{sT2}, s{sT0}, 1")
    a(f"s_lshl_b32 s{sT2}, s{sT2}, 3")
    a(f"s_lshr_b32 s{sNT}, s{sT1}, 2")
    a(f"s_add_u32 s{sNT}, s{sNT}, s{sT2}")
elif MAP == 2:
    a(f"s_and_b32 s{sNT}, s2, 31")
    a(f"s_lshr_b32 s{sMT}, s2, 5")
a(f"s_cmp_lt_u32 s{sW}, 4")
a("s_cbranch_scc1 L_consumer")

vS, vA, vWr, vSc = 1, 2, 7, 9
vT = 10
vSf, vNZ, vP, vRS, vQ, vB = 16, 20, 24, 40, 104, 232
NBUF = 3
def Q(b, j, c=0): return vQ + 32*b + 4*j + c

a(f"s_sub_u32 s{sP}, s{sW}, 4")
a(f"v_mul_u32_u24 v{vT}, 147, v0")
a(f"v_lshrrev_b32 v{vT}, 11, v{vT}")
a(f"v_mul_u32_u24 v{vT+1}, 14, v{vT}")
a(f"v_sub_u32 v{vT+1}, v0, v{vT+1}")
a(f"v_mul_u32_u24 v{vT}, 7168, v{vT}")
a(f"v_lshl_add_u32 v{vS}, v{vT+1}, 4, v{vT}")
a(f"s_mul_i32 s{sT0}, s{sP}, {4*7168}")
a(f"s_mul_i32 s{sT1}, s{sNT}, 224")
a(f"s_add_u32 s{sT0}, s{sT0}, s{sT1}")
a(f"s_mul_i32 s{sT2}, s{sP}, 896")
a(f"s_add_u32 s{sT2}, s{sT2}, {T_BASE}")
a(f"s_mov_b32 s{sS+2}, {16*N*2}")
a(f"s_mov_b32 s{sS+3}, 0x20000")
a(f"s_mov_b32 s{sZ+2}, {16*N*2}")
a(f"s_mov_b32 s{sZ+3}, 0x20000")
a(f"s_mov_b32 s{sQ+2}, {K*N*4}")
a(f"s_mov_b32 s{sQ+3}, 0x20000")
a(f"s_mov_b32 s{sX+2}, {M*K*2}")
a(f"s_mov_b32 s{sX+3}, 0x20000")
a(f"v_lshrrev_b32 v{vT}, 5, v0")
a(f"v_and_b32 v{vT+1}, 31, v0")
a(f"s_lshl_b32 s{sT3}, s{sP}, 1")
a(f"v_add_u32 v{vT+2}, s{sT3}, v{vT}")
a(f"v_mul_u32_u24 v{vT+3}, {8*N*4}, v{vT+2}")
a(f"s_mul_i32 s{sT1}, s{sNT}, 448")
a(f"v_lshl_add_u32 v{vT+3}, v{vT+1}, 4, v{vT+3}")
a(f"v_add_u32 v{vT+3}, s{sT1}, v{vT+3}")
a(f"v_cmp_gt_u32 vcc, 28, v{vT+1}")
a(f"v_mov_b32 v{vT+4}, 0x7f000000")
a(f"s_mov_b32 m0, s{sT2}")
a(f"v_cndmask_b32 v{vB}, v{vT+4}, v{vT+3}, vcc")
a("s_waitcnt lgkmcnt(0)")
a(f"s_mov_b32 s{sS}, s8");  a(f"s_mov_b32 s{sS+1}, s9")
a(f"s_mov_b32 s{sZ}, s10"); a(f"s_mov_b32 s{sZ+1}, s11")
a(f"s_mov_b32 s{sQ}, s6");  a(f"s_mov_b32 s{sQ+1}, s7")
a(f"s_mov_b32 s{sX}, s4");  a(f"s_mov_b32 s{sX+1}, s5")
a("s_mov_b32 exec_hi, 0x00ffffff")
a(f"buffer_load_dwordx4 v{vS}, {srd(sS)}, s{sT0} offen lds", tag=("S",))
a(f"s_add_u32 m0, s{sT2}, 3584")
a("s_nop 0")
a(f"buffer_load_dwordx4 v{vS}, {srd(sZ)}, s{sT0} offen lds", tag=("S",))
a("s_mov_b32 exec_hi, -1")
for j in range(1, 8):
    a(f"v_add_u32 v{vB+j}, {j*N*4}, v{vB}")

def setKB(step):
    a(f"s_mov_b32 s{sKB}, {step*64*N*4}")
def loadB(step, j):
    if NOB: return
    a(f"buffer_load_dwordx4 v[{Q(step%NBUF,j)}:{Q(step%NBUF,j)+3}], v{vB+j}, {srd(sQ)}, s{sKB} offen {BFLAG}".rstrip(), tag=("B", step, j))
def setKA(step):
    a(f"s_mov_b32 s{sKA}, {step*128}")
    a(f"s_mov_b32 s{sKA2}, {step*128 + 65536}")
def loadA(step, i):
    if NOA: return
    if i % 4 == 0:
        a(f"s_add_u32 m0, s{sM0B}, {(step%4)*A_SLOT + (i//4)*4096}")
        a("s_nop 0")
    so = sKA if i < 4 else sKA2
    off = (i % 4) * 1024
    a(f"buffer_load_dwordx4 v{vA+i%4}, {srd(sX)}, s{so} offen" + (f" offset:{off}" if off else "") + f" {AFLAG} lds".replace("  ", " "), tag=("A", step, i))

setKB(0)
for j in range(8): loadB(0, j)
a(f"s_lshl_b32 s{sT0}, s{sMT}, 8")
a(f"s_lshl_b32 s{sT1}, s{sP}, 6")
a(f"s_add_u32 s{sT0}, s{sT0}, s{sT1}")
a(f"s_lshl_b32 s{sT0}, s{sT0}, 11")
a(f"s_lshl_b32 s{sM0B}, s{sP}, 13")
a(f"v_lshrrev_b32 v{vT}, 3, v0")
a(f"v_lshlrev_b32 v{vT}, 11, v{vT}")
a(f"v_add_u32 v{vT}, s{sT0}, v{vT}")
a(f"v_and_b32 v{vT+1}, 7, v0")
a(f"v_lshrrev_b32 v{vT+2}, 4, v0")
a(f"v_xor_b32 v{vT+1}, v{vT+1}, v{vT+2}")
a(f"v_lshl_add_u32 v{vA}, v{vT+1}, 4, v{vT}")
a(f"v_xor_b32 v{vA+1}, 64, v{vA}")
a(f"v_add_u32 v{vA+1}, 15360, v{vA+1}")
a(f"v_add_u32 v{vA+2}, 30720, v{vA}")
a(f"v_add_u32 v{vA+3}, 30720, v{vA+1}")
setKA(0)
for i in range(8): loadA(0, i)
setKB(1)
for j in range(8): loadB(1, j)
setKA(1)
for i in range(8): loadA(1, i)
a(f"v_lshrrev_b32 v{vT}, 5, v0")
a(f"v_add_u32 v{vT}, s{sT3}, v{vT}")
a(f"v_lshrrev_b32 v{vT+1}, 2, v{vT}")
a(f"v_mul_u32_u24 v{vT+1}, 7, v{vT+1}")
a(f"v_and_b32 v{vT+2}, 31, v0")
a(f"v_lshrrev_b32 v{vT+3}, 2, v{vT+2}")
a(f"v_add_u32 v{vT+1}, v{vT+1}, v{vT+3}")
a(f"v_lshlrev_b32 v{vT+1}, 10, v{vT+1}")
a(f"v_and_b32 v{vT}, 3, v{vT}")
a(f"v_lshl_add_u32 v{vT+1}, v{vT}, 8, v{vT+1}")
a(f"v_and_b32 v{vT}, 3, v{vT+2}")
a(f"v_lshl_add_u32 v{vT+1}, v{vT}, 4, v{vT+1}")
a(f"v_and_b32 v{vT+3}, 1, v{vT+3}")
a(f"v_lshl_add_u32 v{vT+1}, v{vT+3}, 6, v{vT+1}")
a(f"v_add_u32 v{vWr}, {B_BASE}, v{vT+1}")
a(f"v_xor_b32 v{vWr+1}, 64, v{vWr}")
a(f"v_min_u32 v{vT+2}, 27, v{vT+2}")
a(f"v_lshlrev_b32 v{vSc}, 3, v{vT+2}")
a(f"v_add_u32 v{vSc}, {T_BASE}, v{vSc}")
a(f"s_mov_b32 s{sEX}, 0x0fffffff")
a(f"s_mov_b32 s{sEX+1}, 0x0fffffff")
a(f"s_mov_b32 s{sMASK}, 0xffff0000")
a.wait_vm(lambda t: t[0] == "S")
a("s_barrier")
stamp()
for g in range(16):
    a(f"ds_read_b64 v[{vRS+4*g}:{vRS+4*g+1}], v{vSc} offset:{g*224}")
    a(f"ds_read_b64 v[{vRS+4*g+2}:{vRS+4*g+3}], v{vSc} offset:{3584+g*224}")
setKB(2)
for j in range(8): loadB(2, j)
a("s_waitcnt lgkmcnt(0)")

def prep(g):
    r = vRS + 4*g
    L = []
    L.append(f"v_lshlrev_b32 v{vSf}, 16, v{r}")
    L.append(f"v_and_b32 v{vSf+1}, s{sMASK}, v{r}")
    L.append(f"v_lshlrev_b32 v{vSf+2}, 16, v{r+1}")
    L.append(f"v_and_b32 v{vSf+3}, s{sMASK}, v{r+1}")
    L.append(f"v_lshlrev_b32 v{vNZ}, 16, v{r+2}")
    L.append(f"v_and_b32 v{vNZ+1}, s{sMASK}, v{r+2}")
    L.append(f"v_lshlrev_b32 v{vNZ+2}, 16, v{r+3}")
    L.append(f"v_and_b32 v{vNZ+3}, s{sMASK}, v{r+3}")
    for c in range(4):
        L.append(f"v_mul_f32_e64 v{vNZ+c}, -v{vNZ+c}, v{vSf+c}")
    return L

def deq_group(step, jj):
    b = step % NBUF
    L = []
    for c in range(4):
        L.append(f"v_cvt_f32_i32 v{Q(b,2*jj,c)}, v{Q(b,2*jj,c)}")
        L.append(f"v_cvt_f32_i32 v{Q(b,2*jj+1,c)}, v{Q(b,2*jj+1,c)}")
    for c in range(4):
        L.append(f"v_fma_f32 v{Q(b,2*jj,c)}, v{Q(b,2*jj,c)}, v{vSf+c}, v{vNZ+c}")
        L.append(f"v_fma_f32 v{Q(b,2*jj+1,c)}, v{Q(b,2*jj+1,c)}, v{vSf+c}, v{vNZ+c}")
    for c in range(4):
        L.append(f"v_cvt_pk_bf16_f32 v{vP+4*c+jj}, v{Q(b,2*jj,c)}, v{Q(b,2*jj+1,c)}")
    return L

def valu(L, dmas):
    if NODEQ: L = []
    n = len(dmas)
    pos = {}
    for k in range(n):
        p = ((k * len(L)) // n + 2) & ~1 if L else 0
        pos.setdefault(min(p, len(L)), []).append(dmas[k])
    for i in range(len(L) + 1):
        for d in pos.get(i, []): loadA(*d)
        if i < len(L): a(L[i])

def producer_iter(s):
    st = s + 1
    As = s + 3
    doA = As < NST
    doB = (s + 4) < NST
    if doA: setKA(As)
    if doB: setKB(s + 4)
    dm = [(As, i) for i in range(8)] if doA else []
    valu(prep(st), dm[0:1])
    for jj in range(4):
        a.wait_vm(lambda t: t[0] == "B" and t[1] == st and t[2] <= 2*jj+1)
        valu(deq_group(st, jj), dm[1+2*jj:3+2*jj])
        if doB:
            loadB(s + 4, 2*jj); loadB(s + 4, 2*jj+1)
    if not NOWR:
        a(f"s_mov_b64 exec, s[{sEX}:{sEX+1}]")
        for c in range(4):
            off = (st % 2) * B_SLOT + (c >> 1) * 128
            a(f"ds_write_b128 v{vWr+(c&1)}, v[{vP+4*c}:{vP+4*c+3}] offset:{off}")
        a("s_mov_b64 exec, -1")
    a.wait_vm(lambda t: t[0] == "A" and t[1] == st, extra="lgkmcnt(0)")
    a("s_barrier")
    stamp()

for s in range(-1, NST - 1):
    producer_iter(s)
if DIAG:
    a("s_memrealtime s[2:3]")
    a("s_branch L_diag")
else:
    a("s_endpgm")

vW = [112, 156]; vXf = [140, 184]
vXb0, vXb1, vX0, vX1, vWe, vWo = 200, 201, 202, 203, 204, 205
vEw, vEr, vOut, vL, vU = 206, 207, 208, 209, 210
def acc(t, m): return (t*4 + m) * 4
a.label("L_consumer", align=8)
if PF:
    a("s_getpc_b64 s[36:37]")
    a.raw("L_pc:")
    a(f"s_sub_u32 s36, s36, L_pc-{NAME}")
    a(f"s_subb_u32 s37, s37, 0")
    a(f"s_mov_b32 s38, L_end-{NAME}+0x40000000-0x40000000")
    a(f"s_mov_b32 s39, 0x20000")
    a(f"s_lshr_b32 s{sT0}, s2, 3")
    a(f"s_lshl_b32 s{sT0}, s{sT0}, 2")
    a(f"s_add_u32 s{sT0}, s{sT0}, s{sW}")
    a(f"s_lshl_b32 s{sT0}, s{sT0}, 8")
    a(f"v_lshlrev_b32 v{vU}, 7, v0")
    a("s_mov_b64 exec, 3")
    a(f"buffer_load_dword v215, v{vU}, {srd(sC)}, s{sT0} offen")
    a("s_mov_b64 exec, -1")
a(f"s_setprio {PRIO}")
a(f"v_mov_b32 v{vL}, v0")
a(f"v_and_b32 v{vU}, 15, v{vL}")
a(f"v_lshrrev_b32 v{vU+1}, 4, v{vL}")
a(f"s_lshl_b32 s{sT0}, s{sW}, 13")
a(f"v_lshrrev_b32 v{vU+2}, 1, v{vU}")
a(f"v_xor_b32 v{vU+2}, v{vU+2}, v{vU+1}")
a(f"v_lshlrev_b32 v{vU+2}, 4, v{vU+2}")
a(f"v_lshl_add_u32 v{vU+2}, v{vU}, 7, v{vU+2}")
a(f"v_add_u32 v{vXb0}, s{sT0}, v{vU+2}")
a(f"v_xor_b32 v{vXb1}, 64, v{vXb0}")
a(f"v_mov_b32 v{vX0}, v{vXb0}")
a(f"v_mov_b32 v{vX1}, v{vXb1}")
a(f"v_and_b32 v{vU+2}, 3, v{vU}")
a(f"v_lshrrev_b32 v{vU+3}, 2, v{vU}")
a(f"v_lshl_add_u32 v{vU+2}, v{vU+2}, 2, v{vU+3}")
a(f"v_lshlrev_b32 v{vU+2}, 4, v{vU+2}")
a(f"v_lshl_add_u32 v{vU+2}, v{vU+1}, 8, v{vU+2}")
a(f"v_add_u32 v{vWe}, {B_BASE}, v{vU+2}")
a(f"v_xor_b32 v{vWo}, 64, v{vWe}")
a(f"v_mul_u32_u24 v{vU+2}, {EP_RS}, v{vU}")
a(f"v_lshl_add_u32 v{vU+2}, v{vU+1}, 3, v{vU+2}")
a(f"v_add_u32 v{vEw}, s{sT0}, v{vU+2}")
a(f"v_mul_u32_u24 v{vU}, 147, v{vL}")
a(f"v_lshrrev_b32 v{vU}, 11, v{vU}")
a(f"v_mul_u32_u24 v{vU+1}, 14, v{vU}")
a(f"v_sub_u32 v{vU+1}, v{vL}, v{vU+1}")
a(f"v_lshlrev_b32 v{vU+1}, 4, v{vU+1}")
a(f"v_mul_u32_u24 v{vU+2}, {EP_RS}, v{vU}")
a(f"v_add_u32 v{vU+2}, v{vU+2}, v{vU+1}")
a(f"v_add_u32 v{vEr}, s{sT0}, v{vU+2}")
a(f"s_lshl_b32 s{sT1}, s{sMT}, 8")
a(f"s_lshl_b32 s{sT2}, s{sW}, 6")
a(f"s_add_u32 s{sT1}, s{sT1}, s{sT2}")
a(f"s_mul_i32 s{sT1}, s{sT1}, {N*2}")
a(f"s_mul_i32 s{sT2}, s{sNT}, 224")
a(f"s_add_u32 s{sT1}, s{sT1}, s{sT2}")
a(f"v_mul_u32_u24 v{vU+2}, {N*2}, v{vU}")
a(f"v_add3_u32 v{vOut}, v{vU+2}, v{vU+1}, s{sT1}")
a(f"s_mov_b32 s{sSLOT}, 0")
a(f"s_mov_b32 s{sCNT}, 0")
a(f"s_mov_b32 s{sO+2}, {M*N*2}")
a(f"s_mov_b32 s{sO+3}, 0x20000")
for i in range(112):
    a(f"v_mov_b32 v{i}, 0")
a("s_waitcnt lgkmcnt(0)")
a(f"s_mov_b32 s{sO}, s12"); a(f"s_mov_b32 s{sO+1}, s13")
a("s_barrier")
a("s_barrier")

def reads(h):
    L = []
    vx = vX0 if h == 0 else vX1
    order = [("W",0),("W",1),("X",0),("W",2),("X",1),("W",3),("X",2),("W",4),("X",3),("W",5),("W",6)]
    for kind, i in order:
        if kind == "W":
            r = vW[h] + 4*i
            L.append(f"ds_read_b128 v[{r}:{r+3}], v{vWo if i & 1 else vWe} offset:{(h*7+i)*1024}")
        else:
            r = vXf[h] + 4*i
            L.append(f"ds_read_b128 v[{r}:{r+3}], v{vx}" + (f" offset:{i*2048}" if i else ""))
    return [] if NOREAD else L

def mfma(t, m, h):
    if NOMFMA: return
    c = acc(t, m)
    a(f"v_mfma_f32_16x16x32_bf16 v[{c}:{c+3}], v[{vW[h]+4*t}:{vW[h]+4*t+3}], v[{vXf[h]+4*m}:{vXf[h]+4*m+3}], v[{c}:{c+3}]")

def half(h, extra, order=None):
    order = order or [(t, m) for t in range(7) for m in range(4)]
    for i, (t, m) in enumerate(order):
        mfma(t, m, h)
        for s_ in extra.get(i, []): a(s_)

def spread(L, start, step):
    d = {}
    for k, s_ in enumerate(L):
        d.setdefault(start + (k * step) // 2, []).append(s_)
    return d

for s_ in reads(0): a(s_)
a.label("L_loop", align=64)
a("s_waitcnt lgkmcnt(0)")
half(0, spread(reads(1), RD0, 2*RDS if RDS < 8 else RDS - 8))
a("s_waitcnt lgkmcnt(0)")
a("s_barrier")
upd = [f"s_add_u32 s{sSLOT}, s{sSLOT}, {A_SLOT}", f"s_and_b32 s{sSLOT}, s{sSLOT}, {4*A_SLOT-1}"]
ex = {0: upd + [f"v_xor_b32 v{vWe}, {B_SLOT}, v{vWe}", f"v_xor_b32 v{vWo}, {B_SLOT}, v{vWo}"],
      1: [f"v_add_u32 v{vX0}, s{sSLOT}, v{vXb0}", f"v_add_u32 v{vX1}, s{sSLOT}, v{vXb1}"]}
rd = spread(reads(0), RD0 + 1, 2*RDS if RDS < 8 else RDS - 8)
for k, v in rd.items(): ex.setdefault(k, []).extend(v)
ex.setdefault(24, []).extend([f"s_add_u32 s{sCNT}, s{sCNT}, 1", f"s_cmp_lt_u32 s{sCNT}, {NST-1}"])
half(1, ex)
a("s_cbranch_scc1 L_loop")
a("s_waitcnt lgkmcnt(0)")
half(0, spread(reads(1), RD0, 2*RDS if RDS < 8 else RDS - 8))
a("s_waitcnt lgkmcnt(0)")
half(1, {}, order=[(t, m) for m in range(4) for t in range(7)])
if DIAG: a("s_memtime s[66:67]")
a("s_nop 7")
tmp = 112
for m in range(4):
    for t in range(7):
        c = acc(t, m)
        r = tmp + 2*(t % 4) + 8*(m % 2)
        a(f"v_cvt_pk_bf16_f32 v{r}, v{c}, v{c+1}")
        a(f"v_cvt_pk_bf16_f32 v{r+1}, v{c+2}, v{c+3}")
        a(f"ds_write_b64 v{vEw}, v[{r}:{r+1}] offset:{m*A_SLOT % 65536 + t*32}")
    if m == 1:
        a(f"v_add_u32 v{vEw}, {2*A_SLOT}, v{vEw}")
a("s_waitcnt lgkmcnt(0)")
a("s_mov_b32 exec_hi, 0x00ffffff")
for m in range(4):
    for j in range(4):
        r = 128 + 16*m + 4*j
        a(f"ds_read_b128 v[{r}:{r+3}], v{vEr} offset:{m*A_SLOT % 65536 + j*4*EP_RS}")
    if m == 1:
        a(f"v_add_u32 v{vEr}, {2*A_SLOT}, v{vEr}")
for m in range(4):
    for j in range(4):
        r = 128 + 16*m + 4*j
        a(f"s_mov_b32 s{sT0 + (j & 1)}, {(16*m + 4*j) * N * 2}")
        a(f"s_waitcnt lgkmcnt({15 - (4*m + j)})")
        if not NOSTORE:
            a(f"buffer_store_dwordx4 v[{r}:{r+3}], v{vOut}, {srd(sO)}, s{sT0 + (j & 1)} offen {STFLAG}".rstrip())
a("s_mov_b32 exec_hi, -1")
if DIAG:
    a("s_memtime s[68:69]")
    a("s_waitcnt vmcnt(0)")
    a("s_memtime s[70:71]")
    a("s_memrealtime s[2:3]")
    a.label("L_diag")
    a("s_waitcnt lgkmcnt(0)")
    a("s_mov_b32 s40, s14"); a("s_mov_b32 s41, s15")
    a("s_mov_b32 s42, 0x1000000"); a("s_mov_b32 s43, 0x20000")
    a("v_mov_b32 v1, 0")
    for i in range(19):
        a(f"v_writelane_b32 v1, s{sSTAMP+2*i}, {i}")
    a("v_writelane_b32 v1, s62, 30")
    a("v_writelane_b32 v1, s2, 31")
    a("s_getreg_b32 s4, hwreg(HW_REG_XCC_ID)")
    a("s_getreg_b32 s5, hwreg(HW_REG_HW_ID)")
    a("v_writelane_b32 v1, s4, 32")
    a("v_writelane_b32 v1, s5, 33")
    a(f"s_lshl_b32 s4, s{sMT}, 5")
    a(f"s_add_u32 s4, s4, s{sNT}")
    a("s_lshl_b32 s4, s4, 3")
    a(f"s_add_u32 s4, s4, s{sW}")
    a("s_lshl_b32 s4, s4, 8")
    a("v_mbcnt_lo_u32_b32 v2, -1, 0")
    a("v_mbcnt_hi_u32_b32 v2, -1, v2")
    a("v_lshlrev_b32 v2, 2, v2")
    a("buffer_store_dword v1, v2, s[40:43], s4 offen")
a.label("L_end")
a("s_endpgm")

out += a.text()
out += f""".section .rodata,"a"
.p2align 6
.amdhsa_kernel {NAME}
  .amdhsa_next_free_vgpr 256
  .amdhsa_next_free_sgpr 102
  .amdhsa_accum_offset 256
  .amdhsa_group_segment_fixed_size 0
  .amdhsa_kernarg_size 56
  .amdhsa_user_sgpr_count 2
  .amdhsa_user_sgpr_kernarg_segment_ptr 1
  .amdhsa_system_sgpr_workgroup_id_x 1
  .amdhsa_float_denorm_mode_32 3
.end_amdhsa_kernel
"""
sys.stdout.write(out)
sys.stderr.write(f"code bytes ~{a.off}, align nops {a.nmis}\n")
```

```python
import sys
from asmb import Asm

P = dict(MAP=0, DIAG=0, NOMFMA=0, NODEQ=0, NOA=0, NOB=0, NOSTORE=0, NOREAD=0, PRIO=1, RD0=0, RDS=1,
         PF=1, PAD=0, ENC=-1, ENCS=10, STFLAG="", BFLAG="", AFLAG="", NAME="standalone__weight_only_int_quip_2__prompt_kernel", NOWR=0)
for a in sys.argv[1:]:
    k, v = a.split("=")
    P[k] = int(v) if v.lstrip("-").isdigit() else v
globals().update(P)

M, K, N = 2048, 1024, 3584
NST = 16
A_SLOT = 32768
B_BASE = 131072
B_SLOT = 16384
LDS_BYTES = B_BASE + B_SLOT + 14336
T_BASE = B_BASE + B_SLOT
EP_RS = 240

a = Asm()
sX, sQ, sS, sZ, sO, sC, sD = 16, 20, 24, 28, 32, 36, 40
sW, sMT, sNT, sP = 44, 45, 46, 47
sT0, sT1, sT2, sT3 = 48, 49, 50, 51
sKA, sKA2, sKB, sM0B, sMASK = 52, 53, 54, 55, 56
sEX = 58
sSLOT, sCNT = 60, 61
sSTAMP = 64
def srd(n): return f"s[{n}:{n+3}]"
nstamp = [0]
def stamp():
    if not DIAG: return
    i = nstamp[0]; nstamp[0] += 1
    assert sSTAMP + 2*i + 1 <= 101
    a(f"s_memtime s[{sSTAMP+2*i}:{sSTAMP+2*i+1}]")

hdr = open("standalone__weight_only_int_quip_2__prompt.s.ref").read().split("; Override launch")[0]
out = hdr
out += f"; @launch grid=(256,1,1) block=(512,1,1) lds={LDS_BYTES}\n"
out += f""".amdgcn_target "amdgcn-amd-amdhsa--gfx950"
.text
.globl {NAME}
.p2align 8
.type {NAME},@function
{NAME}:
"""

a("s_cmp_ge_u32 s2, 256")
a("s_cbranch_scc1 L_end")
a("s_load_dwordx4 s[4:7], s[0:1], 0")
a("s_load_dwordx4 s[8:11], s[0:1], 16")
a("s_load_dwordx2 s[12:13], s[0:1], 32")
if DIAG:
    a("s_load_dwordx2 s[14:15], s[0:1], 48")
    a("s_memrealtime s[62:63]")
    stamp()
if PAD: a("s_memrealtime s[62:63]")
a("v_lshrrev_b32 v1, 6, v0")
a("v_and_b32 v0, 63, v0")
a(f"s_and_b32 {'s%d'%sT0}, s2, 7")
a(f"v_readfirstlane_b32 s{sW}, v1")
a(f"s_lshr_b32 s{sT1}, s2, 3")
if MAP == 0:
    a(f"s_and_b32 s{sT2}, s{sT1}, 3")
    a(f"s_lshl_b32 s{sNT}, s{sT0}, 2")
    a(f"s_add_u32 s{sNT}, s{sNT}, s{sT2}")
    a(f"s_lshr_b32 s{sMT}, s{sT1}, 2")
elif MAP == 1:
    a(f"s_and_b32 s{sT2}, s{sT0}, 1")
    a(f"s_lshl_b32 s{sT2}, s{sT2}, 2")
    a(f"s_and_b32 s{sMT}, s{sT1}, 3")
    a(f"s_add_u32 s{sMT}, s{sMT}, s{sT2}")
    a(f"s_lshr_b32 s{sT2}, s{sT0}, 1")
    a(f"s_lshl_b32 s{sT2}, s{sT2}, 3")
    a(f"s_lshr_b32 s{sNT}, s{sT1}, 2")
    a(f"s_add_u32 s{sNT}, s{sNT}, s{sT2}")
elif MAP == 2:
    a(f"s_and_b32 s{sNT}, s2, 31")
    a(f"s_lshr_b32 s{sMT}, s2, 5")
a(f"s_cmp_lt_u32 s{sW}, 4")
a("s_cbranch_scc1 L_consumer")

vS, vA, vWr, vSc = 1, 2, 7, 9
vT = 10
vSf, vNZ, vP, vRS, vQ, vB = 16, 20, 24, 40, 104, 232
NBUF = 3
def Q(b, j, c=0): return vQ + 32*b + 4*j + c

a(f"s_sub_u32 s{sP}, s{sW}, 4")
a(f"v_mul_u32_u24 v{vT}, 147, v0")
a(f"v_lshrrev_b32 v{vT}, 11, v{vT}")
a(f"v_mul_u32_u24 v{vT+1}, 14, v{vT}")
a(f"v_sub_u32 v{vT+1}, v0, v{vT+1}")
a(f"v_mul_u32_u24 v{vT}, 7168, v{vT}")
a(f"v_lshl_add_u32 v{vS}, v{vT+1}, 4, v{vT}")
a(f"s_mul_i32 s{sT0}, s{sP}, {4*7168}")
a(f"s_mul_i32 s{sT1}, s{sNT}, 224")
a(f"s_add_u32 s{sT0}, s{sT0}, s{sT1}")
a(f"s_mul_i32 s{sT2}, s{sP}, 896")
a(f"s_add_u32 s{sT2}, s{sT2}, {T_BASE}")
a(f"s_mov_b32 s{sS+2}, {16*N*2}")
a(f"s_mov_b32 s{sS+3}, 0x20000")
a(f"s_mov_b32 s{sZ+2}, {16*N*2}")
a(f"s_mov_b32 s{sZ+3}, 0x20000")
a(f"s_mov_b32 s{sQ+2}, {K*N*4}")
a(f"s_mov_b32 s{sQ+3}, 0x20000")
a(f"s_mov_b32 s{sX+2}, {M*K*2}")
a(f"s_mov_b32 s{sX+3}, 0x20000")
a(f"v_lshrrev_b32 v{vT}, 5, v0")
a(f"v_and_b32 v{vT+1}, 31, v0")
a(f"s_lshl_b32 s{sT3}, s{sP}, 1")
a(f"v_add_u32 v{vT+2}, s{sT3}, v{vT}")
a(f"v_mul_u32_u24 v{vT+3}, {8*N*4}, v{vT+2}")
a(f"s_mul_i32 s{sT1}, s{sNT}, 448")
a(f"v_lshl_add_u32 v{vT+3}, v{vT+1}, 4, v{vT+3}")
a(f"v_add_u32 v{vT+3}, s{sT1}, v{vT+3}")
a(f"v_cmp_gt_u32 vcc, 28, v{vT+1}")
a(f"v_mov_b32 v{vT+4}, 0x7f000000")
a(f"s_mov_b32 m0, s{sT2}")
a(f"v_cndmask_b32 v{vB}, v{vT+4}, v{vT+3}, vcc")
a("s_waitcnt lgkmcnt(0)")
a(f"s_mov_b32 s{sS}, s8");  a(f"s_mov_b32 s{sS+1}, s9")
a(f"s_mov_b32 s{sZ}, s10"); a(f"s_mov_b32 s{sZ+1}, s11")
a(f"s_mov_b32 s{sQ}, s6");  a(f"s_mov_b32 s{sQ+1}, s7")
a(f"s_mov_b32 s{sX}, s4");  a(f"s_mov_b32 s{sX+1}, s5")
a("s_mov_b32 exec_hi, 0x00ffffff")
a(f"buffer_load_dwordx4 v{vS}, {srd(sS)}, s{sT0} offen lds", tag=("S",))
a(f"s_add_u32 m0, s{sT2}, 3584")
a("s_nop 0")
a(f"buffer_load_dwordx4 v{vS}, {srd(sZ)}, s{sT0} offen lds", tag=("S",))
a("s_mov_b32 exec_hi, -1")
for j in range(1, 8):
    a(f"v_add_u32 v{vB+j}, {j*N*4}, v{vB}")

def setKB(step):
    a(f"s_mov_b32 s{sKB}, {step*64*N*4}")
def loadB(step, j):
    if NOB: return
    a(f"buffer_load_dwordx4 v[{Q(step%NBUF,j)}:{Q(step%NBUF,j)+3}], v{vB+j}, {srd(sQ)}, s{sKB} offen {BFLAG}".rstrip(), tag=("B", step, j))
def setKA(step):
    a(f"s_mov_b32 s{sKA}, {step*128}")
    a(f"s_mov_b32 s{sKA2}, {step*128 + 65536}")
def loadA(step, i):
    if NOA: return
    if i % 4 == 0:
        a(f"s_add_u32 m0, s{sM0B}, {(step%4)*A_SLOT + (i//4)*4096}")
        a("s_nop 0")
    so = sKA if i < 4 else sKA2
    off = (i % 4) * 1024
    a(f"buffer_load_dwordx4 v{vA+i%4}, {srd(sX)}, s{so} offen" + (f" offset:{off}" if off else "") + f" {AFLAG} lds".replace("  ", " "), tag=("A", step, i))

setKB(0)
for j in range(8): loadB(0, j)
a(f"s_lshl_b32 s{sT0}, s{sMT}, 8")
a(f"s_lshl_b32 s{sT1}, s{sP}, 6")
a(f"s_add_u32 s{sT0}, s{sT0}, s{sT1}")
a(f"s_lshl_b32 s{sT0}, s{sT0}, 11")
a(f"s_lshl_b32 s{sM0B}, s{sP}, 13")
a(f"v_lshrrev_b32 v{vT}, 3, v0")
a(f"v_lshlrev_b32 v{vT}, 11, v{vT}")
a(f"v_add_u32 v{vT}, s{sT0}, v{vT}")
a(f"v_and_b32 v{vT+1}, 7, v0")
a(f"v_lshrrev_b32 v{vT+2}, 4, v0")
a(f"v_xor_b32 v{vT+1}, v{vT+1}, v{vT+2}")
a(f"v_lshl_add_u32 v{vA}, v{vT+1}, 4, v{vT}")
a(f"v_xor_b32 v{vA+1}, 64, v{vA}")
a(f"v_add_u32 v{vA+1}, 15360, v{vA+1}")
a(f"v_add_u32 v{vA+2}, 30720, v{vA}")
a(f"v_add_u32 v{vA+3}, 30720, v{vA+1}")
setKA(0)
for i in range(8): loadA(0, i)
setKB(1)
for j in range(8): loadB(1, j)
setKA(1)
for i in range(8): loadA(1, i)
a(f"v_lshrrev_b32 v{vT}, 5, v0")
a(f"v_add_u32 v{vT}, s{sT3}, v{vT}")
a(f"v_lshrrev_b32 v{vT+1}, 2, v{vT}")
a(f"v_mul_u32_u24 v{vT+1}, 7, v{vT+1}")
a(f"v_and_b32 v{vT+2}, 31, v0")
a(f"v_lshrrev_b32 v{vT+3}, 2, v{vT+2}")
a(f"v_add_u32 v{vT+1}, v{vT+1}, v{vT+3}")
a(f"v_lshlrev_b32 v{vT+1}, 10, v{vT+1}")
a(f"v_and_b32 v{vT}, 3, v{vT}")
a(f"v_lshl_add_u32 v{vT+1}, v{vT}, 8, v{vT+1}")
a(f"v_and_b32 v{vT}, 3, v{vT+2}")
a(f"v_lshl_add_u32 v{vT+1}, v{vT}, 4, v{vT+1}")
a(f"v_and_b32 v{vT+3}, 1, v{vT+3}")
a(f"v_lshl_add_u32 v{vT+1}, v{vT+3}, 6, v{vT+1}")
a(f"v_add_u32 v{vWr}, {B_BASE}, v{vT+1}")
a(f"v_xor_b32 v{vWr+1}, 64, v{vWr}")
a(f"v_min_u32 v{vT+2}, 27, v{vT+2}")
a(f"v_lshlrev_b32 v{vSc}, 3, v{vT+2}")
a(f"v_add_u32 v{vSc}, {T_BASE}, v{vSc}")
a(f"s_mov_b32 s{sEX}, 0x0fffffff")
a(f"s_mov_b32 s{sEX+1}, 0x0fffffff")
a(f"s_mov_b32 s{sMASK}, 0xffff0000")
a.wait_vm(lambda t: t[0] == "S")
a("s_barrier")
stamp()
for g in range(16):
    a(f"ds_read_b64 v[{vRS+4*g}:{vRS+4*g+1}], v{vSc} offset:{g*224}")
    a(f"ds_read_b64 v[{vRS+4*g+2}:{vRS+4*g+3}], v{vSc} offset:{3584+g*224}")
setKB(2)
for j in range(8): loadB(2, j)
a("s_waitcnt lgkmcnt(0)")

def prep(g):
    r = vRS + 4*g
    L = []
    L.append(f"v_lshlrev_b32 v{vSf}, 16, v{r}")
    L.append(f"v_and_b32 v{vSf+1}, s{sMASK}, v{r}")
    L.append(f"v_lshlrev_b32 v{vSf+2}, 16, v{r+1}")
    L.append(f"v_and_b32 v{vSf+3}, s{sMASK}, v{r+1}")
    L.append(f"v_lshlrev_b32 v{vNZ}, 16, v{r+2}")
    L.append(f"v_and_b32 v{vNZ+1}, s{sMASK}, v{r+2}")
    L.append(f"v_lshlrev_b32 v{vNZ+2}, 16, v{r+3}")
    L.append(f"v_and_b32 v{vNZ+3}, s{sMASK}, v{r+3}")
    for c in range(4):
        L.append(f"v_mul_f32_e64 v{vNZ+c}, -v{vNZ+c}, v{vSf+c}")
    return L

def deq_group(step, jj):
    b = step % NBUF
    L = []
    for c in range(4):
        L.append(f"v_cvt_f32_i32 v{Q(b,2*jj,c)}, v{Q(b,2*jj,c)}")
        L.append(f"v_cvt_f32_i32 v{Q(b,2*jj+1,c)}, v{Q(b,2*jj+1,c)}")
    for c in range(4):
        L.append(f"v_fma_f32 v{Q(b,2*jj,c)}, v{Q(b,2*jj,c)}, v{vSf+c}, v{vNZ+c}")
        L.append(f"v_fma_f32 v{Q(b,2*jj+1,c)}, v{Q(b,2*jj+1,c)}, v{vSf+c}, v{vNZ+c}")
    for c in range(4):
        L.append(f"v_cvt_pk_bf16_f32 v{vP+4*c+jj}, v{Q(b,2*jj,c)}, v{Q(b,2*jj+1,c)}")
    return L

def valu(L, dmas):
    if NODEQ: L = []
    n = len(dmas)
    pos = {}
    for k in range(n):
        p = ((k * len(L)) // n + 2) & ~1 if L else 0
        pos.setdefault(min(p, len(L)), []).append(dmas[k])
    for i in range(len(L) + 1):
        for d in pos.get(i, []): loadA(*d)
        if i < len(L): a(L[i])

def producer_iter(s):
    st = s + 1
    As = s + 3
    doA = As < NST
    doB = (s + 4) < NST
    if doA: setKA(As)
    if doB: setKB(s + 4)
    dm = [(As, i) for i in range(8)] if doA else []
    valu(prep(st), dm[0:1])
    for jj in range(4):
        a.wait_vm(lambda t: t[0] == "B" and t[1] == st and t[2] <= 2*jj+1)
        valu(deq_group(st, jj), dm[1+2*jj:3+2*jj])
        if doB:
            loadB(s + 4, 2*jj); loadB(s + 4, 2*jj+1)
    if not NOWR:
        a(f"s_mov_b64 exec, s[{sEX}:{sEX+1}]")
        for c in range(4):
            off = (st % 2) * B_SLOT + (c >> 1) * 128
            a(f"ds_write_b128 v{vWr+(c&1)}, v[{vP+4*c}:{vP+4*c+3}] offset:{off}")
        a("s_mov_b64 exec, -1")
    a.wait_vm(lambda t: t[0] == "A" and t[1] == st, extra="lgkmcnt(0)")
    a("s_barrier")
    stamp()

for s in range(-1, NST - 1):
    producer_iter(s)
if DIAG:
    a("s_memrealtime s[2:3]")
    a("s_branch L_diag")
else:
    a("s_endpgm")

vW = [112, 156]; vXf = [140, 184]
vXb0, vXb1, vX0, vX1, vWe, vWo = 200, 201, 202, 203, 204, 205
vEw, vEr, vOut, vL, vU = 206, 207, 208, 209, 210
def acc(t, m): return (t*4 + m) * 4
a.label("L_consumer", align=8)
if PF:
    a("s_getpc_b64 s[36:37]")
    a.raw("L_pc:")
    a(f"s_sub_u32 s36, s36, L_pc-{NAME}")
    a(f"s_subb_u32 s37, s37, 0")
    a(f"s_mov_b32 s38, L_end-{NAME}+0x40000000-0x40000000")
    a(f"s_mov_b32 s39, 0x20000")
    a(f"s_lshr_b32 s{sT0}, s2, 3")
    a(f"s_lshl_b32 s{sT0}, s{sT0}, 2")
    a(f"s_add_u32 s{sT0}, s{sT0}, s{sW}")
    a(f"s_lshl_b32 s{sT0}, s{sT0}, 8")
    a(f"v_lshlrev_b32 v{vU}, 7, v0")
    a("s_mov_b64 exec, 3")
    a(f"buffer_load_dword v215, v{vU}, {srd(sC)}, s{sT0} offen")
    a("s_mov_b64 exec, -1")
a(f"s_setprio {PRIO}")
a(f"v_mov_b32 v{vL}, v0")
a(f"v_and_b32 v{vU}, 15, v{vL}")
a(f"v_lshrrev_b32 v{vU+1}, 4, v{vL}")
a(f"s_lshl_b32 s{sT0}, s{sW}, 13")
a(f"v_lshrrev_b32 v{vU+2}, 1, v{vU}")
a(f"v_xor_b32 v{vU+2}, v{vU+2}, v{vU+1}")
a(f"v_lshlrev_b32 v{vU+2}, 4, v{vU+2}")
a(f"v_lshl_add_u32 v{vU+2}, v{vU}, 7, v{vU+2}")
a(f"v_add_u32 v{vXb0}, s{sT0}, v{vU+2}")
a(f"v_xor_b32 v{vXb1}, 64, v{vXb0}")
a(f"v_mov_b32 v{vX0}, v{vXb0}")
a(f"v_mov_b32 v{vX1}, v{vXb1}")
a(f"v_and_b32 v{vU+2}, 3, v{vU}")
a(f"v_lshrrev_b32 v{vU+3}, 2, v{vU}")
a(f"v_lshl_add_u32 v{vU+2}, v{vU+2}, 2, v{vU+3}")
a(f"v_lshlrev_b32 v{vU+2}, 4, v{vU+2}")
a(f"v_lshl_add_u32 v{vU+2}, v{vU+1}, 8, v{vU+2}")
a(f"v_add_u32 v{vWe}, {B_BASE}, v{vU+2}")
a(f"v_xor_b32 v{vWo}, 64, v{vWe}")
a(f"v_mul_u32_u24 v{vU+2}, {EP_RS}, v{vU}")
a(f"v_lshl_add_u32 v{vU+2}, v{vU+1}, 3, v{vU+2}")
a(f"v_add_u32 v{vEw}, s{sT0}, v{vU+2}")
a(f"v_mul_u32_u24 v{vU}, 147, v{vL}")
a(f"v_lshrrev_b32 v{vU}, 11, v{vU}")
a(f"v_mul_u32_u24 v{vU+1}, 14, v{vU}")
a(f"v_sub_u32 v{vU+1}, v{vL}, v{vU+1}")
a(f"v_lshlrev_b32 v{vU+1}, 4, v{vU+1}")
a(f"v_mul_u32_u24 v{vU+2}, {EP_RS}, v{vU}")
a(f"v_add_u32 v{vU+2}, v{vU+2}, v{vU+1}")
a(f"v_add_u32 v{vEr}, s{sT0}, v{vU+2}")
a(f"s_lshl_b32 s{sT1}, s{sMT}, 8")
a(f"s_lshl_b32 s{sT2}, s{sW}, 6")
a(f"s_add_u32 s{sT1}, s{sT1}, s{sT2}")
a(f"s_mul_i32 s{sT1}, s{sT1}, {N*2}")
a(f"s_mul_i32 s{sT2}, s{sNT}, 224")
a(f"s_add_u32 s{sT1}, s{sT1}, s{sT2}")
a(f"v_mul_u32_u24 v{vU+2}, {N*2}, v{vU}")
a(f"v_add3_u32 v{vOut}, v{vU+2}, v{vU+1}, s{sT1}")
a(f"s_mov_b32 s{sSLOT}, 0")
a(f"s_mov_b32 s{sCNT}, 0")
a(f"s_mov_b32 s{sO+2}, {M*N*2}")
a(f"s_mov_b32 s{sO+3}, 0x20000")
for i in range(112):
    a(f"v_mov_b32 v{i}, 0")
a("s_waitcnt lgkmcnt(0)")
a(f"s_mov_b32 s{sO}, s12"); a(f"s_mov_b32 s{sO+1}, s13")
a("s_barrier")
a("s_barrier")

def reads(h):
    L = []
    vx = vX0 if h == 0 else vX1
    order = [("W",0),("W",1),("X",0),("W",2),("X",1),("W",3),("X",2),("W",4),("X",3),("W",5),("W",6)]
    for kind, i in order:
        if kind == "W":
            r = vW[h] + 4*i
            L.append(f"ds_read_b128 v[{r}:{r+3}], v{vWo if i & 1 else vWe} offset:{(h*7+i)*1024}")
        else:
            r = vXf[h] + 4*i
            L.append(f"ds_read_b128 v[{r}:{r+3}], v{vx}" + (f" offset:{i*2048}" if i else ""))
    return [] if NOREAD else L

def mfma(t, m, h):
    if NOMFMA: return
    c = acc(t, m)
    a(f"v_mfma_f32_16x16x32_bf16 v[{c}:{c+3}], v[{vW[h]+4*t}:{vW[h]+4*t+3}], v[{vXf[h]+4*m}:{vXf[h]+4*m+3}], v[{c}:{c+3}]")

def half(h, extra, order=None):
    order = order or [(t, m) for t in range(7) for m in range(4)]
    for i, (t, m) in enumerate(order):
        mfma(t, m, h)
        for s_ in extra.get(i, []): a(s_)

def spread(L, start, step):
    d = {}
    for k, s_ in enumerate(L):
        d.setdefault(start + (k * step) // 2, []).append(s_)
    return d

for s_ in reads(0): a(s_)
a.label("L_loop", align=64)
a("s_waitcnt lgkmcnt(0)")
half(0, spread(reads(1), RD0, 2*RDS if RDS < 8 else RDS - 8))
a("s_waitcnt lgkmcnt(0)")
a("s_barrier")
upd = [f"s_add_u32 s{sSLOT}, s{sSLOT}, {A_SLOT}", f"s_and_b32 s{sSLOT}, s{sSLOT}, {4*A_SLOT-1}"]
ex = {0: upd + [f"v_xor_b32 v{vWe}, {B_SLOT}, v{vWe}", f"v_xor_b32 v{vWo}, {B_SLOT}, v{vWo}"],
      1: [f"v_add_u32 v{vX0}, s{sSLOT}, v{vXb0}", f"v_add_u32 v{vX1}, s{sSLOT}, v{vXb1}"]}
rd = spread(reads(0), RD0 + 1, 2*RDS if RDS < 8 else RDS - 8)
for k, v in rd.items(): ex.setdefault(k, []).extend(v)
ex.setdefault(24, []).extend([f"s_add_u32 s{sCNT}, s{sCNT}, 1", f"s_cmp_lt_u32 s{sCNT}, {NST-1}"])
half(1, ex)
a("s_cbranch_scc1 L_loop")
a("s_waitcnt lgkmcnt(0)")
half(0, spread(reads(1), RD0, 2*RDS if RDS < 8 else RDS - 8))
a("s_waitcnt lgkmcnt(0)")
half(1, {}, order=[(t, m) for m in range(4) for t in range(7)])
if DIAG: a("s_memtime s[66:67]")
a("s_nop 7")
tmp = 112
for m in range(4):
    for t in range(7):
        c = acc(t, m)
        r = tmp + 2*(t % 4) + 8*(m % 2)
        a(f"v_cvt_pk_bf16_f32 v{r}, v{c}, v{c+1}")
        a(f"v_cvt_pk_bf16_f32 v{r+1}, v{c+2}, v{c+3}")
        a(f"ds_write_b64 v{vEw}, v[{r}:{r+1}] offset:{m*A_SLOT % 65536 + t*32}")
    if m == 1:
        a(f"v_add_u32 v{vEw}, {2*A_SLOT}, v{vEw}")
a("s_waitcnt lgkmcnt(0)")
a("s_mov_b32 exec_hi, 0x00ffffff")
for m in range(4):
    for j in range(4):
        r = 128 + 16*m + 4*j
        a(f"ds_read_b128 v[{r}:{r+3}], v{vEr} offset:{m*A_SLOT % 65536 + j*4*EP_RS}")
    if m == 1:
        a(f"v_add_u32 v{vEr}, {2*A_SLOT}, v{vEr}")
for m in range(4):
    for j in range(4):
        r = 128 + 16*m + 4*j
        a(f"s_mov_b32 s{sT0 + (j & 1)}, {(16*m + 4*j) * N * 2}")
        a(f"s_waitcnt lgkmcnt({15 - (4*m + j)})")
        if not NOSTORE:
            a(f"buffer_store_dwordx4 v[{r}:{r+3}], v{vOut}, {srd(sO)}, s{sT0 + (j & 1)} offen {STFLAG}".rstrip())
a("s_mov_b32 exec_hi, -1")
if PAD:
    a("s_waitcnt vmcnt(0)")
    a.label("L_pad")
    a("s_memrealtime s[2:3]")
    a("s_waitcnt lgkmcnt(0)")
    a("s_sub_u32 s2, s2, s62")
    a(f"s_cmp_lt_u32 s2, {PAD}")
    a("s_cbranch_scc1 L_pad")
if DIAG:
    a("s_memtime s[68:69]")
    a("s_waitcnt vmcnt(0)")
    a("s_memtime s[70:71]")
    a("s_memrealtime s[2:3]")
    a.label("L_diag")
    a("s_waitcnt lgkmcnt(0)")
    a("s_mov_b32 s40, s14"); a("s_mov_b32 s41, s15")
    a("s_mov_b32 s42, 0x1000000"); a("s_mov_b32 s43, 0x20000")
    a("v_mov_b32 v1, 0")
    for i in range(19):
        a(f"v_writelane_b32 v1, s{sSTAMP+2*i}, {i}")
    a("v_writelane_b32 v1, s62, 30")
    a("v_writelane_b32 v1, s2, 31")
    a("s_getreg_b32 s4, hwreg(HW_REG_XCC_ID)")
    a("s_getreg_b32 s5, hwreg(HW_REG_HW_ID)")
    a("v_writelane_b32 v1, s4, 32")
    a("v_writelane_b32 v1, s5, 33")
    a(f"s_lshl_b32 s4, s{sMT}, 5")
    a(f"s_add_u32 s4, s4, s{sNT}")
    a("s_lshl_b32 s4, s4, 3")
    a(f"s_add_u32 s4, s4, s{sW}")
    a("s_lshl_b32 s4, s4, 8")
    a("v_mbcnt_lo_u32_b32 v2, -1, 0")
    a("v_mbcnt_hi_u32_b32 v2, -1, v2")
    a("v_lshlrev_b32 v2, 2, v2")
    a("buffer_store_dword v1, v2, s[40:43], s4 offen")
a.label("L_end")
a("s_endpgm")

out += a.text()
out += f""".section .rodata,"a"
.p2align 6
.amdhsa_kernel {NAME}
  .amdhsa_next_free_vgpr 256
  .amdhsa_next_free_sgpr 102
  .amdhsa_accum_offset 256
  .amdhsa_group_segment_fixed_size 0
  .amdhsa_kernarg_size 56
  .amdhsa_user_sgpr_count 2
  .amdhsa_user_sgpr_kernarg_segment_ptr 1
  .amdhsa_system_sgpr_workgroup_id_x 1
  .amdhsa_float_denorm_mode_32 3
.end_amdhsa_kernel
"""
sys.stdout.write(out)
sys.stderr.write(f"code bytes ~{a.off}, align nops {a.nmis}\n")
```

```python
import sys
from asmb import Asm

P = dict(MAP=0, DIAG=0, NOMFMA=0, NODEQ=0, NOA=0, NOB=0, NOSTORE=0, NOREAD=0, PRIO=1, RD0=0, RDS=1,
         PF=1, SAME=0, AVG=0, PAD=0, ENC=-1, ENCS=10, STFLAG="", BFLAG="", AFLAG="", NAME="standalone__weight_only_int_quip_2__prompt_kernel", NOWR=0)
for a in sys.argv[1:]:
    k, v = a.split("=")
    P[k] = int(v) if v.lstrip("-").isdigit() else v
globals().update(P)

M, K, N = 2048, 1024, 3584
NST = 16
A_SLOT = 32768
B_BASE = 131072
B_SLOT = 16384
LDS_BYTES = B_BASE + B_SLOT + 14336
T_BASE = B_BASE + B_SLOT
EP_RS = 240

a = Asm()
sX, sQ, sS, sZ, sO, sC, sD = 16, 20, 24, 28, 32, 36, 40
sW, sMT, sNT, sP = 44, 45, 46, 47
sT0, sT1, sT2, sT3 = 48, 49, 50, 51
sKA, sKA2, sKB, sM0B, sMASK = 52, 53, 54, 55, 56
sEX = 58
sSLOT, sCNT = 60, 61
sSTAMP = 64
def srd(n): return f"s[{n}:{n+3}]"
nstamp = [0]
def stamp():
    if not DIAG: return
    i = nstamp[0]; nstamp[0] += 1
    assert sSTAMP + 2*i + 1 <= 101
    a(f"s_memtime s[{sSTAMP+2*i}:{sSTAMP+2*i+1}]")

hdr = open("standalone__weight_only_int_quip_2__prompt.s.ref").read().split("; Override launch")[0]
out = hdr
out += f"; @launch grid=(256,1,1) block=(512,1,1) lds={LDS_BYTES}\n"
out += f""".amdgcn_target "amdgcn-amd-amdhsa--gfx950"
.text
.globl {NAME}
.p2align 8
.type {NAME},@function
{NAME}:
"""

a("s_cmp_ge_u32 s2, 256")
a("s_cbranch_scc1 L_end")
a("s_load_dwordx4 s[4:7], s[0:1], 0")
a("s_load_dwordx4 s[8:11], s[0:1], 16")
a("s_load_dwordx2 s[12:13], s[0:1], 32")
if DIAG:
    a("s_load_dwordx2 s[14:15], s[0:1], 48")
    a("s_memrealtime s[62:63]")
    a("s_mov_b32 s57, s2")
    stamp()
if PAD: a("s_memrealtime s[62:63]")
if ENC >= 0:
    a("s_memrealtime s[62:63]")
    a("s_memtime s[70:71]")
    a("s_mov_b32 s57, s2")
a("v_lshrrev_b32 v1, 6, v0")
a("v_and_b32 v0, 63, v0")
a(f"s_and_b32 {'s%d'%sT0}, s2, 7")
a(f"v_readfirstlane_b32 s{sW}, v1")
a(f"s_lshr_b32 s{sT1}, s2, 3")
if MAP == 0:
    a(f"s_and_b32 s{sT2}, s{sT1}, 3")
    a(f"s_lshl_b32 s{sNT}, s{sT0}, 2")
    a(f"s_add_u32 s{sNT}, s{sNT}, s{sT2}")
    a(f"s_lshr_b32 s{sMT}, s{sT1}, 2")
elif MAP == 1:
    a(f"s_and_b32 s{sT2}, s{sT0}, 1")
    a(f"s_lshl_b32 s{sT2}, s{sT2}, 2")
    a(f"s_and_b32 s{sMT}, s{sT1}, 3")
    a(f"s_add_u32 s{sMT}, s{sMT}, s{sT2}")
    a(f"s_lshr_b32 s{sT2}, s{sT0}, 1")
    a(f"s_lshl_b32 s{sT2}, s{sT2}, 3")
    a(f"s_lshr_b32 s{sNT}, s{sT1}, 2")
    a(f"s_add_u32 s{sNT}, s{sNT}, s{sT2}")
elif MAP == 2:
    a(f"s_and_b32 s{sNT}, s2, 31")
    a(f"s_lshr_b32 s{sMT}, s2, 5")
if SAME == 1:
    a(f"s_mov_b32 s{sMT}, 0"); a(f"s_mov_b32 s{sNT}, 0")
elif SAME == 2:
    a(f"s_mov_b32 s{sMT}, 0"); a(f"s_mov_b32 s{sNT}, 1")
elif SAME == 3:
    a(f"s_and_b32 s{sMT}, s2, 7"); a(f"s_and_b32 s{sNT}, s2, 7"); a(f"s_lshl_b32 s{sNT}, s{sNT}, 1")
elif SAME == 4:
    a(f"s_mov_b32 s{sMT}, 0")
elif SAME == 5:
    a(f"s_mov_b32 s{sNT}, 0")
a(f"s_cmp_lt_u32 s{sW}, 4")
a("s_cbranch_scc1 L_consumer")

vS, vA, vWr, vSc = 1, 2, 7, 9
vT = 10
vSf, vNZ, vP, vRS, vQ, vB = 16, 20, 24, 40, 104, 232
NBUF = 3
def Q(b, j, c=0): return vQ + 32*b + 4*j + c

a(f"s_sub_u32 s{sP}, s{sW}, 4")
a(f"v_mul_u32_u24 v{vT}, 147, v0")
a(f"v_lshrrev_b32 v{vT}, 11, v{vT}")
a(f"v_mul_u32_u24 v{vT+1}, 14, v{vT}")
a(f"v_sub_u32 v{vT+1}, v0, v{vT+1}")
a(f"v_mul_u32_u24 v{vT}, 7168, v{vT}")
a(f"v_lshl_add_u32 v{vS}, v{vT+1}, 4, v{vT}")
a(f"s_mul_i32 s{sT0}, s{sP}, {4*7168}")
a(f"s_mul_i32 s{sT1}, s{sNT}, 224")
a(f"s_add_u32 s{sT0}, s{sT0}, s{sT1}")
a(f"s_mul_i32 s{sT2}, s{sP}, 896")
a(f"s_add_u32 s{sT2}, s{sT2}, {T_BASE}")
a(f"s_mov_b32 s{sS+2}, {16*N*2}")
a(f"s_mov_b32 s{sS+3}, 0x20000")
a(f"s_mov_b32 s{sZ+2}, {16*N*2}")
a(f"s_mov_b32 s{sZ+3}, 0x20000")
a(f"s_mov_b32 s{sQ+2}, {K*N*4}")
a(f"s_mov_b32 s{sQ+3}, 0x20000")
a(f"s_mov_b32 s{sX+2}, {M*K*2}")
a(f"s_mov_b32 s{sX+3}, 0x20000")
a(f"v_lshrrev_b32 v{vT}, 5, v0")
a(f"v_and_b32 v{vT+1}, 31, v0")
a(f"s_lshl_b32 s{sT3}, s{sP}, 1")
a(f"v_add_u32 v{vT+2}, s{sT3}, v{vT}")
a(f"v_mul_u32_u24 v{vT+3}, {8*N*4}, v{vT+2}")
a(f"s_mul_i32 s{sT1}, s{sNT}, 448")
a(f"v_lshl_add_u32 v{vT+3}, v{vT+1}, 4, v{vT+3}")
a(f"v_add_u32 v{vT+3}, s{sT1}, v{vT+3}")
a(f"v_cmp_gt_u32 vcc, 28, v{vT+1}")
a(f"v_mov_b32 v{vT+4}, 0x7f000000")
a(f"s_mov_b32 m0, s{sT2}")
a(f"v_cndmask_b32 v{vB}, v{vT+4}, v{vT+3}, vcc")
a("s_waitcnt lgkmcnt(0)")
a(f"s_mov_b32 s{sS}, s8");  a(f"s_mov_b32 s{sS+1}, s9")
a(f"s_mov_b32 s{sZ}, s10"); a(f"s_mov_b32 s{sZ+1}, s11")
a(f"s_mov_b32 s{sQ}, s6");  a(f"s_mov_b32 s{sQ+1}, s7")
a(f"s_mov_b32 s{sX}, s4");  a(f"s_mov_b32 s{sX+1}, s5")
a("s_mov_b32 exec_hi, 0x00ffffff")
a(f"buffer_load_dwordx4 v{vS}, {srd(sS)}, s{sT0} offen lds", tag=("S",))
a(f"s_add_u32 m0, s{sT2}, 3584")
a("s_nop 0")
a(f"buffer_load_dwordx4 v{vS}, {srd(sZ)}, s{sT0} offen lds", tag=("S",))
a("s_mov_b32 exec_hi, -1")
for j in range(1, 8):
    a(f"v_add_u32 v{vB+j}, {j*N*4}, v{vB}")

def setKB(step):
    a(f"s_mov_b32 s{sKB}, {step*64*N*4}")
def loadB(step, j):
    if NOB: return
    a(f"buffer_load_dwordx4 v[{Q(step%NBUF,j)}:{Q(step%NBUF,j)+3}], v{vB+j}, {srd(sQ)}, s{sKB} offen {BFLAG}".rstrip(), tag=("B", step, j))
def setKA(step):
    a(f"s_mov_b32 s{sKA}, {step*128}")
    a(f"s_mov_b32 s{sKA2}, {step*128 + 65536}")
def loadA(step, i):
    if NOA: return
    if i % 4 == 0:
        a(f"s_add_u32 m0, s{sM0B}, {(step%4)*A_SLOT + (i//4)*4096}")
        a("s_nop 0")
    so = sKA if i < 4 else sKA2
    off = (i % 4) * 1024
    if AVG:
        a(f"buffer_load_dwordx4 v[{200+4*(i%8)}:{203+4*(i%8)}], v{vA+i%4}, {srd(sX)}, s{so} offen" + (f" offset:{off}" if off else ""), tag=("A", step, i))
        return
    a(f"buffer_load_dwordx4 v{vA+i%4}, {srd(sX)}, s{so} offen" + (f" offset:{off}" if off else "") + f" {AFLAG} lds".replace("  ", " "), tag=("A", step, i))

setKB(0)
for j in range(8): loadB(0, j)
a(f"s_lshl_b32 s{sT0}, s{sMT}, 8")
a(f"s_lshl_b32 s{sT1}, s{sP}, 6")
a(f"s_add_u32 s{sT0}, s{sT0}, s{sT1}")
a(f"s_lshl_b32 s{sT0}, s{sT0}, 11")
a(f"s_lshl_b32 s{sM0B}, s{sP}, 13")
a(f"v_lshrrev_b32 v{vT}, 3, v0")
a(f"v_lshlrev_b32 v{vT}, 11, v{vT}")
a(f"v_add_u32 v{vT}, s{sT0}, v{vT}")
a(f"v_and_b32 v{vT+1}, 7, v0")
a(f"v_lshrrev_b32 v{vT+2}, 4, v0")
a(f"v_xor_b32 v{vT+1}, v{vT+1}, v{vT+2}")
a(f"v_lshl_add_u32 v{vA}, v{vT+1}, 4, v{vT}")
a(f"v_xor_b32 v{vA+1}, 64, v{vA}")
a(f"v_add_u32 v{vA+1}, 15360, v{vA+1}")
a(f"v_add_u32 v{vA+2}, 30720, v{vA}")
a(f"v_add_u32 v{vA+3}, 30720, v{vA+1}")
setKA(0)
for i in range(8): loadA(0, i)
setKB(1)
for j in range(8): loadB(1, j)
setKA(1)
for i in range(8): loadA(1, i)
a(f"v_lshrrev_b32 v{vT}, 5, v0")
a(f"v_add_u32 v{vT}, s{sT3}, v{vT}")
a(f"v_lshrrev_b32 v{vT+1}, 2, v{vT}")
a(f"v_mul_u32_u24 v{vT+1}, 7, v{vT+1}")
a(f"v_and_b32 v{vT+2}, 31, v0")
a(f"v_lshrrev_b32 v{vT+3}, 2, v{vT+2}")
a(f"v_add_u32 v{vT+1}, v{vT+1}, v{vT+3}")
a(f"v_lshlrev_b32 v{vT+1}, 10, v{vT+1}")
a(f"v_and_b32 v{vT}, 3, v{vT}")
a(f"v_lshl_add_u32 v{vT+1}, v{vT}, 8, v{vT+1}")
a(f"v_and_b32 v{vT}, 3, v{vT+2}")
a(f"v_lshl_add_u32 v{vT+1}, v{vT}, 4, v{vT+1}")
a(f"v_and_b32 v{vT+3}, 1, v{vT+3}")
a(f"v_lshl_add_u32 v{vT+1}, v{vT+3}, 6, v{vT+1}")
a(f"v_add_u32 v{vWr}, {B_BASE}, v{vT+1}")
a(f"v_xor_b32 v{vWr+1}, 64, v{vWr}")
a(f"v_min_u32 v{vT+2}, 27, v{vT+2}")
a(f"v_lshlrev_b32 v{vSc}, 3, v{vT+2}")
a(f"v_add_u32 v{vSc}, {T_BASE}, v{vSc}")
a(f"s_mov_b32 s{sEX}, 0x0fffffff")
a(f"s_mov_b32 s{sEX+1}, 0x0fffffff")
a(f"s_mov_b32 s{sMASK}, 0xffff0000")
a.wait_vm(lambda t: t[0] == "S")
a("s_barrier")
stamp()
for g in range(16):
    a(f"ds_read_b64 v[{vRS+4*g}:{vRS+4*g+1}], v{vSc} offset:{g*224}")
    a(f"ds_read_b64 v[{vRS+4*g+2}:{vRS+4*g+3}], v{vSc} offset:{3584+g*224}")
setKB(2)
for j in range(8): loadB(2, j)
a("s_waitcnt lgkmcnt(0)")

def prep(g):
    r = vRS + 4*g
    L = []
    L.append(f"v_lshlrev_b32 v{vSf}, 16, v{r}")
    L.append(f"v_and_b32 v{vSf+1}, s{sMASK}, v{r}")
    L.append(f"v_lshlrev_b32 v{vSf+2}, 16, v{r+1}")
    L.append(f"v_and_b32 v{vSf+3}, s{sMASK}, v{r+1}")
    L.append(f"v_lshlrev_b32 v{vNZ}, 16, v{r+2}")
    L.append(f"v_and_b32 v{vNZ+1}, s{sMASK}, v{r+2}")
    L.append(f"v_lshlrev_b32 v{vNZ+2}, 16, v{r+3}")
    L.append(f"v_and_b32 v{vNZ+3}, s{sMASK}, v{r+3}")
    for c in range(4):
        L.append(f"v_mul_f32_e64 v{vNZ+c}, -v{vNZ+c}, v{vSf+c}")
    return L

def deq_group(step, jj):
    b = step % NBUF
    L = []
    for c in range(4):
        L.append(f"v_cvt_f32_i32 v{Q(b,2*jj,c)}, v{Q(b,2*jj,c)}")
        L.append(f"v_cvt_f32_i32 v{Q(b,2*jj+1,c)}, v{Q(b,2*jj+1,c)}")
    for c in range(4):
        L.append(f"v_fma_f32 v{Q(b,2*jj,c)}, v{Q(b,2*jj,c)}, v{vSf+c}, v{vNZ+c}")
        L.append(f"v_fma_f32 v{Q(b,2*jj+1,c)}, v{Q(b,2*jj+1,c)}, v{vSf+c}, v{vNZ+c}")
    for c in range(4):
        L.append(f"v_cvt_pk_bf16_f32 v{vP+4*c+jj}, v{Q(b,2*jj,c)}, v{Q(b,2*jj+1,c)}")
    return L

def valu(L, dmas):
    if NODEQ: L = []
    n = len(dmas)
    pos = {}
    for k in range(n):
        p = ((k * len(L)) // n + 2) & ~1 if L else 0
        pos.setdefault(min(p, len(L)), []).append(dmas[k])
    for i in range(len(L) + 1):
        for d in pos.get(i, []): loadA(*d)
        if i < len(L): a(L[i])

def producer_iter(s):
    st = s + 1
    As = s + 3
    doA = As < NST
    doB = (s + 4) < NST
    if doA: setKA(As)
    if doB: setKB(s + 4)
    dm = [(As, i) for i in range(8)] if doA else []
    valu(prep(st), dm[0:1])
    for jj in range(4):
        a.wait_vm(lambda t: t[0] == "B" and t[1] == st and t[2] <= 2*jj+1)
        valu(deq_group(st, jj), dm[1+2*jj:3+2*jj])
        if doB:
            loadB(s + 4, 2*jj); loadB(s + 4, 2*jj+1)
    if not NOWR:
        a(f"s_mov_b64 exec, s[{sEX}:{sEX+1}]")
        for c in range(4):
            off = (st % 2) * B_SLOT + (c >> 1) * 128
            a(f"ds_write_b128 v{vWr+(c&1)}, v[{vP+4*c}:{vP+4*c+3}] offset:{off}")
        a("s_mov_b64 exec, -1")
    a.wait_vm(lambda t: t[0] == "A" and t[1] == st, extra="lgkmcnt(0)")
    a("s_barrier")
    stamp()
    if ENC == 0:
        if s == 2: a("s_memtime s[70:71]")
        if s == 12: a("s_memtime s[72:73]")
    if ENC == 1 and s == -1: a("s_memtime s[72:73]")

for s in range(-1, NST - 1):
    producer_iter(s)
if ENC >= 0:
    a("s_waitcnt lgkmcnt(0)")
    a("s_cmp_lg_u32 s57, 100")
    a("s_cbranch_scc1 L_encdone")
    a(f"s_cmp_lg_u32 s{sW}, 4")
    a("s_cbranch_scc1 L_encdone")
    a("s_sub_u32 s72, s72, s70")
    a(f"s_mul_i32 s72, s72, {ENCS}")
    a("s_lshr_b32 s72, s72, 4")
    a("s_add_u32 s72, s72, 3000")
    a.label("L_enc")
    a("s_memrealtime s[2:3]")
    a("s_waitcnt lgkmcnt(0)")
    a("s_sub_u32 s2, s2, s62")
    a("s_cmp_lt_u32 s2, s72")
    a("s_cbranch_scc1 L_enc")
    a.label("L_encdone")
if DIAG:
    a("s_memrealtime s[2:3]")
    a("s_branch L_diag")
else:
    a("s_endpgm")

vW = [112, 156]; vXf = [140, 184]
vXb0, vXb1, vX0, vX1, vWe, vWo = 200, 201, 202, 203, 204, 205
vEw, vEr, vOut, vL, vU = 206, 207, 208, 209, 210
def acc(t, m): return (t*4 + m) * 4
a.label("L_consumer", align=8)
if PF:
    a("s_getpc_b64 s[36:37]")
    a.raw("L_pc:")
    a(f"s_sub_u32 s36, s36, L_pc-{NAME}")
    a(f"s_subb_u32 s37, s37, 0")
    a(f"s_mov_b32 s38, L_end-{NAME}+0x40000000-0x40000000")
    a(f"s_mov_b32 s39, 0x20000")
    a(f"s_lshr_b32 s{sT0}, s2, 3")
    a(f"s_lshl_b32 s{sT0}, s{sT0}, 2")
    a(f"s_add_u32 s{sT0}, s{sT0}, s{sW}")
    a(f"s_lshl_b32 s{sT0}, s{sT0}, 8")
    a(f"v_lshlrev_b32 v{vU}, 7, v0")
    a("s_mov_b64 exec, 3")
    a(f"buffer_load_dword v215, v{vU}, {srd(sC)}, s{sT0} offen")
    a("s_mov_b64 exec, -1")
a(f"s_setprio {PRIO}")
a(f"v_mov_b32 v{vL}, v0")
a(f"v_and_b32 v{vU}, 15, v{vL}")
a(f"v_lshrrev_b32 v{vU+1}, 4, v{vL}")
a(f"s_lshl_b32 s{sT0}, s{sW}, 13")
a(f"v_lshrrev_b32 v{vU+2}, 1, v{vU}")
a(f"v_xor_b32 v{vU+2}, v{vU+2}, v{vU+1}")
a(f"v_lshlrev_b32 v{vU+2}, 4, v{vU+2}")
a(f"v_lshl_add_u32 v{vU+2}, v{vU}, 7, v{vU+2}")
a(f"v_add_u32 v{vXb0}, s{sT0}, v{vU+2}")
a(f"v_xor_b32 v{vXb1}, 64, v{vXb0}")
a(f"v_mov_b32 v{vX0}, v{vXb0}")
a(f"v_mov_b32 v{vX1}, v{vXb1}")
a(f"v_and_b32 v{vU+2}, 3, v{vU}")
a(f"v_lshrrev_b32 v{vU+3}, 2, v{vU}")
a(f"v_lshl_add_u32 v{vU+2}, v{vU+2}, 2, v{vU+3}")
a(f"v_lshlrev_b32 v{vU+2}, 4, v{vU+2}")
a(f"v_lshl_add_u32 v{vU+2}, v{vU+1}, 8, v{vU+2}")
a(f"v_add_u32 v{vWe}, {B_BASE}, v{vU+2}")
a(f"v_xor_b32 v{vWo}, 64, v{vWe}")
a(f"v_mul_u32_u24 v{vU+2}, {EP_RS}, v{vU}")
a(f"v_lshl_add_u32 v{vU+2}, v{vU+1}, 3, v{vU+2}")
a(f"v_add_u32 v{vEw}, s{sT0}, v{vU+2}")
a(f"v_mul_u32_u24 v{vU}, 147, v{vL}")
a(f"v_lshrrev_b32 v{vU}, 11, v{vU}")
a(f"v_mul_u32_u24 v{vU+1}, 14, v{vU}")
a(f"v_sub_u32 v{vU+1}, v{vL}, v{vU+1}")
a(f"v_lshlrev_b32 v{vU+1}, 4, v{vU+1}")
a(f"v_mul_u32_u24 v{vU+2}, {EP_RS}, v{vU}")
a(f"v_add_u32 v{vU+2}, v{vU+2}, v{vU+1}")
a(f"v_add_u32 v{vEr}, s{sT0}, v{vU+2}")
a(f"s_lshl_b32 s{sT1}, s{sMT}, 8")
a(f"s_lshl_b32 s{sT2}, s{sW}, 6")
a(f"s_add_u32 s{sT1}, s{sT1}, s{sT2}")
a(f"s_mul_i32 s{sT1}, s{sT1}, {N*2}")
a(f"s_mul_i32 s{sT2}, s{sNT}, 224")
a(f"s_add_u32 s{sT1}, s{sT1}, s{sT2}")
a(f"v_mul_u32_u24 v{vU+2}, {N*2}, v{vU}")
a(f"v_add3_u32 v{vOut}, v{vU+2}, v{vU+1}, s{sT1}")
a(f"s_mov_b32 s{sSLOT}, 0")
a(f"s_mov_b32 s{sCNT}, 0")
a(f"s_mov_b32 s{sO+2}, {M*N*2}")
a(f"s_mov_b32 s{sO+3}, 0x20000")
for i in range(112):
    a(f"v_mov_b32 v{i}, 0")
a("s_waitcnt lgkmcnt(0)")
a(f"s_mov_b32 s{sO}, s12"); a(f"s_mov_b32 s{sO+1}, s13")
a("s_barrier")
a("s_barrier")

def reads(h):
    L = []
    vx = vX0 if h == 0 else vX1
    order = [("W",0),("W",1),("X",0),("W",2),("X",1),("W",3),("X",2),("W",4),("X",3),("W",5),("W",6)]
    for kind, i in order:
        if kind == "W":
            r = vW[h] + 4*i
            L.append(f"ds_read_b128 v[{r}:{r+3}], v{vWo if i & 1 else vWe} offset:{(h*7+i)*1024}")
        else:
            r = vXf[h] + 4*i
            L.append(f"ds_read_b128 v[{r}:{r+3}], v{vx}" + (f" offset:{i*2048}" if i else ""))
    return [] if NOREAD else L

def mfma(t, m, h):
    if NOMFMA: return
    c = acc(t, m)
    a(f"v_mfma_f32_16x16x32_bf16 v[{c}:{c+3}], v[{vW[h]+4*t}:{vW[h]+4*t+3}], v[{vXf[h]+4*m}:{vXf[h]+4*m+3}], v[{c}:{c+3}]")

def half(h, extra, order=None):
    order = order or [(t, m) for t in range(7) for m in range(4)]
    for i, (t, m) in enumerate(order):
        mfma(t, m, h)
        for s_ in extra.get(i, []): a(s_)

def spread(L, start, step):
    d = {}
    for k, s_ in enumerate(L):
        d.setdefault(start + (k * step) // 2, []).append(s_)
    return d

for s_ in reads(0): a(s_)
a.label("L_loop", align=64)
a("s_waitcnt lgkmcnt(0)")
half(0, spread(reads(1), RD0, 2*RDS if RDS < 8 else RDS - 8))
a("s_waitcnt lgkmcnt(0)")
a("s_barrier")
upd = [f"s_add_u32 s{sSLOT}, s{sSLOT}, {A_SLOT}", f"s_and_b32 s{sSLOT}, s{sSLOT}, {4*A_SLOT-1}"]
ex = {0: upd + [f"v_xor_b32 v{vWe}, {B_SLOT}, v{vWe}", f"v_xor_b32 v{vWo}, {B_SLOT}, v{vWo}"],
      1: [f"v_add_u32 v{vX0}, s{sSLOT}, v{vXb0}", f"v_add_u32 v{vX1}, s{sSLOT}, v{vXb1}"]}
rd = spread(reads(0), RD0 + 1, 2*RDS if RDS < 8 else RDS - 8)
for k, v in rd.items(): ex.setdefault(k, []).extend(v)
ex.setdefault(24, []).extend([f"s_add_u32 s{sCNT}, s{sCNT}, 1", f"s_cmp_lt_u32 s{sCNT}, {NST-1}"])
half(1, ex)
a("s_cbranch_scc1 L_loop")
a("s_waitcnt lgkmcnt(0)")
half(0, spread(reads(1), RD0, 2*RDS if RDS < 8 else RDS - 8))
a("s_waitcnt lgkmcnt(0)")
half(1, {}, order=[(t, m) for m in range(4) for t in range(7)])
if DIAG: a("s_memtime s[66:67]")
a("s_nop 7")
tmp = 112
for m in range(4):
    for t in range(7):
        c = acc(t, m)
        r = tmp + 2*(t % 4) + 8*(m % 2)
        a(f"v_cvt_pk_bf16_f32 v{r}, v{c}, v{c+1}")
        a(f"v_cvt_pk_bf16_f32 v{r+1}, v{c+2}, v{c+3}")
        a(f"ds_write_b64 v{vEw}, v[{r}:{r+1}] offset:{m*A_SLOT % 65536 + t*32}")
    if m == 1:
        a(f"v_add_u32 v{vEw}, {2*A_SLOT}, v{vEw}")
a("s_waitcnt lgkmcnt(0)")
a("s_mov_b32 exec_hi, 0x00ffffff")
for m in range(4):
    for j in range(4):
        r = 128 + 16*m + 4*j
        a(f"ds_read_b128 v[{r}:{r+3}], v{vEr} offset:{m*A_SLOT % 65536 + j*4*EP_RS}")
    if m == 1:
        a(f"v_add_u32 v{vEr}, {2*A_SLOT}, v{vEr}")
for m in range(4):
    for j in range(4):
        r = 128 + 16*m + 4*j
        a(f"s_mov_b32 s{sT0 + (j & 1)}, {(16*m + 4*j) * N * 2}")
        a(f"s_waitcnt lgkmcnt({15 - (4*m + j)})")
        if not NOSTORE:
            a(f"buffer_store_dwordx4 v[{r}:{r+3}], v{vOut}, {srd(sO)}, s{sT0 + (j & 1)} offen {STFLAG}".rstrip())
a("s_mov_b32 exec_hi, -1")
if PAD:
    a("s_waitcnt vmcnt(0)")
    a.label("L_pad")
    a("s_memrealtime s[2:3]")
    a("s_waitcnt lgkmcnt(0)")
    a("s_sub_u32 s2, s2, s62")
    a(f"s_cmp_lt_u32 s2, {PAD}")
    a("s_cbranch_scc1 L_pad")
if DIAG:
    a("s_memtime s[68:69]")
    a("s_waitcnt vmcnt(0)")
    a("s_memtime s[70:71]")
    a("s_memrealtime s[2:3]")
    a.label("L_diag")
    a("s_waitcnt lgkmcnt(0)")
    a("s_mov_b32 s40, s14"); a("s_mov_b32 s41, s15")
    a("s_mov_b32 s42, 0x1000000"); a("s_mov_b32 s43, 0x20000")
    a("v_mov_b32 v1, 0")
    for i in range(19):
        a(f"v_writelane_b32 v1, s{sSTAMP+2*i}, {i}")
    a("v_writelane_b32 v1, s62, 30")
    a("v_writelane_b32 v1, s2, 31")
    a("s_getreg_b32 s4, hwreg(HW_REG_XCC_ID)")
    a("s_getreg_b32 s5, hwreg(HW_REG_HW_ID)")
    a("v_writelane_b32 v1, s4, 32")
    a("v_writelane_b32 v1, s5, 33")
    a("s_lshl_b32 s4, s57, 3")
    a(f"s_add_u32 s4, s4, s{sW}")
    a("s_lshl_b32 s4, s4, 8")
    a("v_mbcnt_lo_u32_b32 v2, -1, 0")
    a("v_mbcnt_hi_u32_b32 v2, -1, v2")
    a("v_lshlrev_b32 v2, 2, v2")
    a("buffer_store_dword v1, v2, s[40:43], s4 offen")
a.label("L_end")
a("s_endpgm")

out += a.text()
out += f""".section .rodata,"a"
.p2align 6
.amdhsa_kernel {NAME}
  .amdhsa_next_free_vgpr 256
  .amdhsa_next_free_sgpr 102
  .amdhsa_accum_offset 256
  .amdhsa_group_segment_fixed_size 0
  .amdhsa_kernarg_size 56
  .amdhsa_user_sgpr_count 2
  .amdhsa_user_sgpr_kernarg_segment_ptr 1
  .amdhsa_system_sgpr_workgroup_id_x 1
  .amdhsa_float_denorm_mode_32 3
.end_amdhsa_kernel
"""
sys.stdout.write(out)
sys.stderr.write(f"code bytes ~{a.off}, align nops {a.nmis}\n")
```

```python
import sys
from asmb import Asm

P = dict(MAP=0, DIAG=0, NOMFMA=0, NODEQ=0, NOA=0, NOB=0, NOSTORE=0, NOREAD=0, PRIO=1, RD0=0, RDS=1,
         PF=1, SAME=0, AVG=0, PAD=0, ENC=-1, ENCS=10, STFLAG="", BFLAG="", AFLAG="", NAME="standalone__weight_only_int_quip_2__prompt_kernel", NOWR=0)
for a in sys.argv[1:]:
    k, v = a.split("=")
    P[k] = int(v) if v.lstrip("-").isdigit() else v
globals().update(P)

M, K, N = 2048, 1024, 3584
NST = 16
A_SLOT = 32768
B_BASE = 131072
B_SLOT = 16384
LDS_BYTES = B_BASE + B_SLOT + 14336
T_BASE = B_BASE + B_SLOT
EP_RS = 240

a = Asm()
sX, sQ, sS, sZ, sO, sC, sD = 16, 20, 24, 28, 32, 36, 40
sW, sMT, sNT, sP = 44, 45, 46, 47
sT0, sT1, sT2, sT3 = 48, 49, 50, 51
sKA, sKA2, sKB, sM0B, sMASK = 52, 53, 54, 55, 56
sEX = 58
sSLOT, sCNT = 60, 61
sSTAMP = 64
def srd(n): return f"s[{n}:{n+3}]"
nstamp = [0]
def stamp():
    if not DIAG: return
    i = nstamp[0]; nstamp[0] += 1
    assert sSTAMP + 2*i + 1 <= 101
    a(f"s_memtime s[{sSTAMP+2*i}:{sSTAMP+2*i+1}]")

hdr = open("standalone__weight_only_int_quip_2__prompt.s.ref").read().split("; Override launch")[0]
out = hdr
out += f"; @launch grid=(256,1,1) block=(512,1,1) lds={LDS_BYTES}\n"
out += f""".amdgcn_target "amdgcn-amd-amdhsa--gfx950"
.text
.globl {NAME}
.p2align 8
.type {NAME},@function
{NAME}:
"""

a("s_cmp_ge_u32 s2, 256")
a("s_cbranch_scc1 L_end")
a("s_load_dwordx4 s[4:7], s[0:1], 0")
a("s_load_dwordx4 s[8:11], s[0:1], 16")
a("s_load_dwordx2 s[12:13], s[0:1], 32")
if DIAG:
    a("s_load_dwordx2 s[14:15], s[0:1], 48")
    a("s_memrealtime s[62:63]")
    a("s_mov_b32 s57, s2")
    stamp()
if PAD: a("s_memrealtime s[62:63]")
if ENC >= 0:
    a("s_memrealtime s[62:63]")
    a("s_memtime s[70:71]" if ENC < 3 else "s_memrealtime s[70:71]")
    a("s_mov_b32 s57, s2")
a("v_lshrrev_b32 v1, 6, v0")
a("v_and_b32 v0, 63, v0")
a(f"s_and_b32 {'s%d'%sT0}, s2, 7")
a(f"v_readfirstlane_b32 s{sW}, v1")
a(f"s_lshr_b32 s{sT1}, s2, 3")
if MAP == 0:
    a(f"s_and_b32 s{sT2}, s{sT1}, 3")
    a(f"s_lshl_b32 s{sNT}, s{sT0}, 2")
    a(f"s_add_u32 s{sNT}, s{sNT}, s{sT2}")
    a(f"s_lshr_b32 s{sMT}, s{sT1}, 2")
elif MAP == 1:
    a(f"s_and_b32 s{sT2}, s{sT0}, 1")
    a(f"s_lshl_b32 s{sT2}, s{sT2}, 2")
    a(f"s_and_b32 s{sMT}, s{sT1}, 3")
    a(f"s_add_u32 s{sMT}, s{sMT}, s{sT2}")
    a(f"s_lshr_b32 s{sT2}, s{sT0}, 1")
    a(f"s_lshl_b32 s{sT2}, s{sT2}, 3")
    a(f"s_lshr_b32 s{sNT}, s{sT1}, 2")
    a(f"s_add_u32 s{sNT}, s{sNT}, s{sT2}")
elif MAP == 2:
    a(f"s_and_b32 s{sNT}, s2, 31")
    a(f"s_lshr_b32 s{sMT}, s2, 5")
if SAME == 1:
    a(f"s_mov_b32 s{sMT}, 0"); a(f"s_mov_b32 s{sNT}, 0")
elif SAME == 2:
    a(f"s_mov_b32 s{sMT}, 0"); a(f"s_mov_b32 s{sNT}, 1")
elif SAME == 3:
    a(f"s_and_b32 s{sMT}, s2, 7"); a(f"s_and_b32 s{sNT}, s2, 7"); a(f"s_lshl_b32 s{sNT}, s{sNT}, 1")
elif SAME == 4:
    a(f"s_mov_b32 s{sMT}, 0")
elif SAME == 5:
    a(f"s_mov_b32 s{sNT}, 0")
a(f"s_cmp_lt_u32 s{sW}, 4")
a("s_cbranch_scc1 L_consumer")

vS, vA, vWr, vSc = 1, 2, 7, 9
vT = 10
vSf, vNZ, vP, vRS, vQ, vB = 16, 20, 24, 40, 104, 232
NBUF = 3
def Q(b, j, c=0): return vQ + 32*b + 4*j + c

a(f"s_sub_u32 s{sP}, s{sW}, 4")
a(f"v_mul_u32_u24 v{vT}, 147, v0")
a(f"v_lshrrev_b32 v{vT}, 11, v{vT}")
a(f"v_mul_u32_u24 v{vT+1}, 14, v{vT}")
a(f"v_sub_u32 v{vT+1}, v0, v{vT+1}")
a(f"v_mul_u32_u24 v{vT}, 7168, v{vT}")
a(f"v_lshl_add_u32 v{vS}, v{vT+1}, 4, v{vT}")
a(f"s_mul_i32 s{sT0}, s{sP}, {4*7168}")
a(f"s_mul_i32 s{sT1}, s{sNT}, 224")
a(f"s_add_u32 s{sT0}, s{sT0}, s{sT1}")
a(f"s_mul_i32 s{sT2}, s{sP}, 896")
a(f"s_add_u32 s{sT2}, s{sT2}, {T_BASE}")
a(f"s_mov_b32 s{sS+2}, {16*N*2}")
a(f"s_mov_b32 s{sS+3}, 0x20000")
a(f"s_mov_b32 s{sZ+2}, {16*N*2}")
a(f"s_mov_b32 s{sZ+3}, 0x20000")
a(f"s_mov_b32 s{sQ+2}, {K*N*4}")
a(f"s_mov_b32 s{sQ+3}, 0x20000")
a(f"s_mov_b32 s{sX+2}, {M*K*2}")
a(f"s_mov_b32 s{sX+3}, 0x20000")
a(f"v_lshrrev_b32 v{vT}, 5, v0")
a(f"v_and_b32 v{vT+1}, 31, v0")
a(f"s_lshl_b32 s{sT3}, s{sP}, 1")
a(f"v_add_u32 v{vT+2}, s{sT3}, v{vT}")
a(f"v_mul_u32_u24 v{vT+3}, {8*N*4}, v{vT+2}")
a(f"s_mul_i32 s{sT1}, s{sNT}, 448")
a(f"v_lshl_add_u32 v{vT+3}, v{vT+1}, 4, v{vT+3}")
a(f"v_add_u32 v{vT+3}, s{sT1}, v{vT+3}")
a(f"v_cmp_gt_u32 vcc, 28, v{vT+1}")
a(f"v_mov_b32 v{vT+4}, 0x7f000000")
a(f"s_mov_b32 m0, s{sT2}")
a(f"v_cndmask_b32 v{vB}, v{vT+4}, v{vT+3}, vcc")
a("s_waitcnt lgkmcnt(0)")
a(f"s_mov_b32 s{sS}, s8");  a(f"s_mov_b32 s{sS+1}, s9")
a(f"s_mov_b32 s{sZ}, s10"); a(f"s_mov_b32 s{sZ+1}, s11")
a(f"s_mov_b32 s{sQ}, s6");  a(f"s_mov_b32 s{sQ+1}, s7")
a(f"s_mov_b32 s{sX}, s4");  a(f"s_mov_b32 s{sX+1}, s5")
a("s_mov_b32 exec_hi, 0x00ffffff")
a(f"buffer_load_dwordx4 v{vS}, {srd(sS)}, s{sT0} offen lds", tag=("S",))
a(f"s_add_u32 m0, s{sT2}, 3584")
a("s_nop 0")
a(f"buffer_load_dwordx4 v{vS}, {srd(sZ)}, s{sT0} offen lds", tag=("S",))
a("s_mov_b32 exec_hi, -1")
for j in range(1, 8):
    a(f"v_add_u32 v{vB+j}, {j*N*4}, v{vB}")

def setKB(step):
    a(f"s_mov_b32 s{sKB}, {step*64*N*4}")
def loadB(step, j):
    if NOB: return
    a(f"buffer_load_dwordx4 v[{Q(step%NBUF,j)}:{Q(step%NBUF,j)+3}], v{vB+j}, {srd(sQ)}, s{sKB} offen {BFLAG}".rstrip(), tag=("B", step, j))
def setKA(step):
    a(f"s_mov_b32 s{sKA}, {step*128}")
    a(f"s_mov_b32 s{sKA2}, {step*128 + 65536}")
def loadA(step, i):
    if NOA: return
    if i % 4 == 0:
        a(f"s_add_u32 m0, s{sM0B}, {(step%4)*A_SLOT + (i//4)*4096}")
        a("s_nop 0")
    so = sKA if i < 4 else sKA2
    off = (i % 4) * 1024
    if AVG:
        a(f"buffer_load_dwordx4 v[{200+4*(i%8)}:{203+4*(i%8)}], v{vA+i%4}, {srd(sX)}, s{so} offen" + (f" offset:{off}" if off else ""), tag=("A", step, i))
        return
    a(f"buffer_load_dwordx4 v{vA+i%4}, {srd(sX)}, s{so} offen" + (f" offset:{off}" if off else "") + f" {AFLAG} lds".replace("  ", " "), tag=("A", step, i))

setKB(0)
for j in range(8): loadB(0, j)
a(f"s_lshl_b32 s{sT0}, s{sMT}, 8")
a(f"s_lshl_b32 s{sT1}, s{sP}, 6")
a(f"s_add_u32 s{sT0}, s{sT0}, s{sT1}")
a(f"s_lshl_b32 s{sT0}, s{sT0}, 11")
a(f"s_lshl_b32 s{sM0B}, s{sP}, 13")
a(f"v_lshrrev_b32 v{vT}, 3, v0")
a(f"v_lshlrev_b32 v{vT}, 11, v{vT}")
a(f"v_add_u32 v{vT}, s{sT0}, v{vT}")
a(f"v_and_b32 v{vT+1}, 7, v0")
a(f"v_lshrrev_b32 v{vT+2}, 4, v0")
a(f"v_xor_b32 v{vT+1}, v{vT+1}, v{vT+2}")
a(f"v_lshl_add_u32 v{vA}, v{vT+1}, 4, v{vT}")
a(f"v_xor_b32 v{vA+1}, 64, v{vA}")
a(f"v_add_u32 v{vA+1}, 15360, v{vA+1}")
a(f"v_add_u32 v{vA+2}, 30720, v{vA}")
a(f"v_add_u32 v{vA+3}, 30720, v{vA+1}")
setKA(0)
for i in range(8): loadA(0, i)
setKB(1)
for j in range(8): loadB(1, j)
setKA(1)
for i in range(8): loadA(1, i)
a(f"v_lshrrev_b32 v{vT}, 5, v0")
a(f"v_add_u32 v{vT}, s{sT3}, v{vT}")
a(f"v_lshrrev_b32 v{vT+1}, 2, v{vT}")
a(f"v_mul_u32_u24 v{vT+1}, 7, v{vT+1}")
a(f"v_and_b32 v{vT+2}, 31, v0")
a(f"v_lshrrev_b32 v{vT+3}, 2, v{vT+2}")
a(f"v_add_u32 v{vT+1}, v{vT+1}, v{vT+3}")
a(f"v_lshlrev_b32 v{vT+1}, 10, v{vT+1}")
a(f"v_and_b32 v{vT}, 3, v{vT}")
a(f"v_lshl_add_u32 v{vT+1}, v{vT}, 8, v{vT+1}")
a(f"v_and_b32 v{vT}, 3, v{vT+2}")
a(f"v_lshl_add_u32 v{vT+1}, v{vT}, 4, v{vT+1}")
a(f"v_and_b32 v{vT+3}, 1, v{vT+3}")
a(f"v_lshl_add_u32 v{vT+1}, v{vT+3}, 6, v{vT+1}")
a(f"v_add_u32 v{vWr}, {B_BASE}, v{vT+1}")
a(f"v_xor_b32 v{vWr+1}, 64, v{vWr}")
a(f"v_min_u32 v{vT+2}, 27, v{vT+2}")
a(f"v_lshlrev_b32 v{vSc}, 3, v{vT+2}")
a(f"v_add_u32 v{vSc}, {T_BASE}, v{vSc}")
a(f"s_mov_b32 s{sEX}, 0x0fffffff")
a(f"s_mov_b32 s{sEX+1}, 0x0fffffff")
a(f"s_mov_b32 s{sMASK}, 0xffff0000")
a.wait_vm(lambda t: t[0] == "S")
a("s_barrier")
stamp()
for g in range(16):
    a(f"ds_read_b64 v[{vRS+4*g}:{vRS+4*g+1}], v{vSc} offset:{g*224}")
    a(f"ds_read_b64 v[{vRS+4*g+2}:{vRS+4*g+3}], v{vSc} offset:{3584+g*224}")
setKB(2)
for j in range(8): loadB(2, j)
a("s_waitcnt lgkmcnt(0)")

def prep(g):
    r = vRS + 4*g
    L = []
    L.append(f"v_lshlrev_b32 v{vSf}, 16, v{r}")
    L.append(f"v_and_b32 v{vSf+1}, s{sMASK}, v{r}")
    L.append(f"v_lshlrev_b32 v{vSf+2}, 16, v{r+1}")
    L.append(f"v_and_b32 v{vSf+3}, s{sMASK}, v{r+1}")
    L.append(f"v_lshlrev_b32 v{vNZ}, 16, v{r+2}")
    L.append(f"v_and_b32 v{vNZ+1}, s{sMASK}, v{r+2}")
    L.append(f"v_lshlrev_b32 v{vNZ+2}, 16, v{r+3}")
    L.append(f"v_and_b32 v{vNZ+3}, s{sMASK}, v{r+3}")
    for c in range(4):
        L.append(f"v_mul_f32_e64 v{vNZ+c}, -v{vNZ+c}, v{vSf+c}")
    return L

def deq_group(step, jj):
    b = step % NBUF
    L = []
    for c in range(4):
        L.append(f"v_cvt_f32_i32 v{Q(b,2*jj,c)}, v{Q(b,2*jj,c)}")
        L.append(f"v_cvt_f32_i32 v{Q(b,2*jj+1,c)}, v{Q(b,2*jj+1,c)}")
    for c in range(4):
        L.append(f"v_fma_f32 v{Q(b,2*jj,c)}, v{Q(b,2*jj,c)}, v{vSf+c}, v{vNZ+c}")
        L.append(f"v_fma_f32 v{Q(b,2*jj+1,c)}, v{Q(b,2*jj+1,c)}, v{vSf+c}, v{vNZ+c}")
    for c in range(4):
        L.append(f"v_cvt_pk_bf16_f32 v{vP+4*c+jj}, v{Q(b,2*jj,c)}, v{Q(b,2*jj+1,c)}")
    return L

def valu(L, dmas):
    if NODEQ: L = []
    n = len(dmas)
    pos = {}
    for k in range(n):
        p = ((k * len(L)) // n + 2) & ~1 if L else 0
        pos.setdefault(min(p, len(L)), []).append(dmas[k])
    for i in range(len(L) + 1):
        for d in pos.get(i, []): loadA(*d)
        if i < len(L): a(L[i])

def producer_iter(s):
    st = s + 1
    As = s + 3
    doA = As < NST
    doB = (s + 4) < NST
    if doA: setKA(As)
    if doB: setKB(s + 4)
    dm = [(As, i) for i in range(8)] if doA else []
    valu(prep(st), dm[0:1])
    for jj in range(4):
        a.wait_vm(lambda t: t[0] == "B" and t[1] == st and t[2] <= 2*jj+1)
        valu(deq_group(st, jj), dm[1+2*jj:3+2*jj])
        if doB:
            loadB(s + 4, 2*jj); loadB(s + 4, 2*jj+1)
    if not NOWR:
        a(f"s_mov_b64 exec, s[{sEX}:{sEX+1}]")
        for c in range(4):
            off = (st % 2) * B_SLOT + (c >> 1) * 128
            a(f"ds_write_b128 v{vWr+(c&1)}, v[{vP+4*c}:{vP+4*c+3}] offset:{off}")
        a("s_mov_b64 exec, -1")
    a.wait_vm(lambda t: t[0] == "A" and t[1] == st, extra="lgkmcnt(0)")
    a("s_barrier")
    stamp()
    if ENC == 0:
        if s == 2: a("s_memtime s[70:71]")
        if s == 12: a("s_memtime s[72:73]")
    if ENC == 1 and s == -1: a("s_memtime s[72:73]")
    if ENC == 2:
        if s == 2: a("s_memrealtime s[70:71]")
        if s == 12: a("s_memrealtime s[72:73]")
    if ENC == 3:
        if s == -1: a("s_memrealtime s[72:73]")
    if ENC == 4:
        if s == 14: a("s_memrealtime s[72:73]")

for s in range(-1, NST - 1):
    producer_iter(s)
if ENC >= 0:
    a("s_waitcnt lgkmcnt(0)")
    a("s_cmp_lg_u32 s57, 100")
    a("s_cbranch_scc1 L_encdone")
    a(f"s_cmp_lg_u32 s{sW}, 4")
    a("s_cbranch_scc1 L_encdone")
    a("s_sub_u32 s72, s72, s70")
    a(f"s_mul_i32 s72, s72, {ENCS}")
    a("s_lshr_b32 s72, s72, 4")
    a("s_add_u32 s72, s72, 3000")
    a.label("L_enc")
    a("s_memrealtime s[2:3]")
    a("s_waitcnt lgkmcnt(0)")
    a("s_sub_u32 s2, s2, s62")
    a("s_cmp_lt_u32 s2, s72")
    a("s_cbranch_scc1 L_enc")
    a.label("L_encdone")
if DIAG:
    a("s_memrealtime s[2:3]")
    a("s_branch L_diag")
else:
    a("s_endpgm")

vW = [112, 156]; vXf = [140, 184]
vXb0, vXb1, vX0, vX1, vWe, vWo = 200, 201, 202, 203, 204, 205
vEw, vEr, vOut, vL, vU = 206, 207, 208, 209, 210
def acc(t, m): return (t*4 + m) * 4
a.label("L_consumer", align=8)
if PF:
    a("s_getpc_b64 s[36:37]")
    a.raw("L_pc:")
    a(f"s_sub_u32 s36, s36, L_pc-{NAME}")
    a(f"s_subb_u32 s37, s37, 0")
    a(f"s_mov_b32 s38, L_end-{NAME}+0x40000000-0x40000000")
    a(f"s_mov_b32 s39, 0x20000")
    a(f"s_lshr_b32 s{sT0}, s2, 3")
    a(f"s_lshl_b32 s{sT0}, s{sT0}, 2")
    a(f"s_add_u32 s{sT0}, s{sT0}, s{sW}")
    a(f"s_lshl_b32 s{sT0}, s{sT0}, 8")
    a(f"v_lshlrev_b32 v{vU}, 7, v0")
    a("s_mov_b64 exec, 3")
    a(f"buffer_load_dword v215, v{vU}, {srd(sC)}, s{sT0} offen")
    a("s_mov_b64 exec, -1")
a(f"s_setprio {PRIO}")
a(f"v_mov_b32 v{vL}, v0")
a(f"v_and_b32 v{vU}, 15, v{vL}")
a(f"v_lshrrev_b32 v{vU+1}, 4, v{vL}")
a(f"s_lshl_b32 s{sT0}, s{sW}, 13")
a(f"v_lshrrev_b32 v{vU+2}, 1, v{vU}")
a(f"v_xor_b32 v{vU+2}, v{vU+2}, v{vU+1}")
a(f"v_lshlrev_b32 v{vU+2}, 4, v{vU+2}")
a(f"v_lshl_add_u32 v{vU+2}, v{vU}, 7, v{vU+2}")
a(f"v_add_u32 v{vXb0}, s{sT0}, v{vU+2}")
a(f"v_xor_b32 v{vXb1}, 64, v{vXb0}")
a(f"v_mov_b32 v{vX0}, v{vXb0}")
a(f"v_mov_b32 v{vX1}, v{vXb1}")
a(f"v_and_b32 v{vU+2}, 3, v{vU}")
a(f"v_lshrrev_b32 v{vU+3}, 2, v{vU}")
a(f"v_lshl_add_u32 v{vU+2}, v{vU+2}, 2, v{vU+3}")
a(f"v_lshlrev_b32 v{vU+2}, 4, v{vU+2}")
a(f"v_lshl_add_u32 v{vU+2}, v{vU+1}, 8, v{vU+2}")
a(f"v_add_u32 v{vWe}, {B_BASE}, v{vU+2}")
a(f"v_xor_b32 v{vWo}, 64, v{vWe}")
a(f"v_mul_u32_u24 v{vU+2}, {EP_RS}, v{vU}")
a(f"v_lshl_add_u32 v{vU+2}, v{vU+1}, 3, v{vU+2}")
a(f"v_add_u32 v{vEw}, s{sT0}, v{vU+2}")
a(f"v_mul_u32_u24 v{vU}, 147, v{vL}")
a(f"v_lshrrev_b32 v{vU}, 11, v{vU}")
a(f"v_mul_u32_u24 v{vU+1}, 14, v{vU}")
a(f"v_sub_u32 v{vU+1}, v{vL}, v{vU+1}")
a(f"v_lshlrev_b32 v{vU+1}, 4, v{vU+1}")
a(f"v_mul_u32_u24 v{vU+2}, {EP_RS}, v{vU}")
a(f"v_add_u32 v{vU+2}, v{vU+2}, v{vU+1}")
a(f"v_add_u32 v{vEr}, s{sT0}, v{vU+2}")
a(f"s_lshl_b32 s{sT1}, s{sMT}, 8")
a(f"s_lshl_b32 s{sT2}, s{sW}, 6")
a(f"s_add_u32 s{sT1}, s{sT1}, s{sT2}")
a(f"s_mul_i32 s{sT1}, s{sT1}, {N*2}")
a(f"s_mul_i32 s{sT2}, s{sNT}, 224")
a(f"s_add_u32 s{sT1}, s{sT1}, s{sT2}")
a(f"v_mul_u32_u24 v{vU+2}, {N*2}, v{vU}")
a(f"v_add3_u32 v{vOut}, v{vU+2}, v{vU+1}, s{sT1}")
a(f"s_mov_b32 s{sSLOT}, 0")
a(f"s_mov_b32 s{sCNT}, 0")
a(f"s_mov_b32 s{sO+2}, {M*N*2}")
a(f"s_mov_b32 s{sO+3}, 0x20000")
for i in range(112):
    a(f"v_mov_b32 v{i}, 0")
a("s_waitcnt lgkmcnt(0)")
a(f"s_mov_b32 s{sO}, s12"); a(f"s_mov_b32 s{sO+1}, s13")
a("s_barrier")
a("s_barrier")

def reads(h):
    L = []
    vx = vX0 if h == 0 else vX1
    order = [("W",0),("W",1),("X",0),("W",2),("X",1),("W",3),("X",2),("W",4),("X",3),("W",5),("W",6)]
    for kind, i in order:
        if kind == "W":
            r = vW[h] + 4*i
            L.append(f"ds_read_b128 v[{r}:{r+3}], v{vWo if i & 1 else vWe} offset:{(h*7+i)*1024}")
        else:
            r = vXf[h] + 4*i
            L.append(f"ds_read_b128 v[{r}:{r+3}], v{vx}" + (f" offset:{i*2048}" if i else ""))
    return [] if NOREAD else L

def mfma(t, m, h):
    if NOMFMA: return
    c = acc(t, m)
    a(f"v_mfma_f32_16x16x32_bf16 v[{c}:{c+3}], v[{vW[h]+4*t}:{vW[h]+4*t+3}], v[{vXf[h]+4*m}:{vXf[h]+4*m+3}], v[{c}:{c+3}]")

def half(h, extra, order=None):
    order = order or [(t, m) for t in range(7) for m in range(4)]
    for i, (t, m) in enumerate(order):
        mfma(t, m, h)
        for s_ in extra.get(i, []): a(s_)

def spread(L, start, step):
    d = {}
    for k, s_ in enumerate(L):
        d.setdefault(start + (k * step) // 2, []).append(s_)
    return d

for s_ in reads(0): a(s_)
a.label("L_loop", align=64)
a("s_waitcnt lgkmcnt(0)")
half(0, spread(reads(1), RD0, 2*RDS if RDS < 8 else RDS - 8))
a("s_waitcnt lgkmcnt(0)")
a("s_barrier")
upd = [f"s_add_u32 s{sSLOT}, s{sSLOT}, {A_SLOT}", f"s_and_b32 s{sSLOT}, s{sSLOT}, {4*A_SLOT-1}"]
ex = {0: upd + [f"v_xor_b32 v{vWe}, {B_SLOT}, v{vWe}", f"v_xor_b32 v{vWo}, {B_SLOT}, v{vWo}"],
      1: [f"v_add_u32 v{vX0}, s{sSLOT}, v{vXb0}", f"v_add_u32 v{vX1}, s{sSLOT}, v{vXb1}"]}
rd = spread(reads(0), RD0 + 1, 2*RDS if RDS < 8 else RDS - 8)
for k, v in rd.items(): ex.setdefault(k, []).extend(v)
ex.setdefault(24, []).extend([f"s_add_u32 s{sCNT}, s{sCNT}, 1", f"s_cmp_lt_u32 s{sCNT}, {NST-1}"])
half(1, ex)
a("s_cbranch_scc1 L_loop")
a("s_waitcnt lgkmcnt(0)")
half(0, spread(reads(1), RD0, 2*RDS if RDS < 8 else RDS - 8))
a("s_waitcnt lgkmcnt(0)")
half(1, {}, order=[(t, m) for m in range(4) for t in range(7)])
if DIAG: a("s_memtime s[66:67]")
a("s_nop 7")
tmp = 112
for m in range(4):
    for t in range(7):
        c = acc(t, m)
        r = tmp + 2*(t % 4) + 8*(m % 2)
        a(f"v_cvt_pk_bf16_f32 v{r}, v{c}, v{c+1}")
        a(f"v_cvt_pk_bf16_f32 v{r+1}, v{c+2}, v{c+3}")
        a(f"ds_write_b64 v{vEw}, v[{r}:{r+1}] offset:{m*A_SLOT % 65536 + t*32}")
    if m == 1:
        a(f"v_add_u32 v{vEw}, {2*A_SLOT}, v{vEw}")
a("s_waitcnt lgkmcnt(0)")
a("s_mov_b32 exec_hi, 0x00ffffff")
for m in range(4):
    for j in range(4):
        r = 128 + 16*m + 4*j
        a(f"ds_read_b128 v[{r}:{r+3}], v{vEr} offset:{m*A_SLOT % 65536 + j*4*EP_RS}")
    if m == 1:
        a(f"v_add_u32 v{vEr}, {2*A_SLOT}, v{vEr}")
for m in range(4):
    for j in range(4):
        r = 128 + 16*m + 4*j
        a(f"s_mov_b32 s{sT0 + (j & 1)}, {(16*m + 4*j) * N * 2}")
        a(f"s_waitcnt lgkmcnt({15 - (4*m + j)})")
        if not NOSTORE:
            a(f"buffer_store_dwordx4 v[{r}:{r+3}], v{vOut}, {srd(sO)}, s{sT0 + (j & 1)} offen {STFLAG}".rstrip())
a("s_mov_b32 exec_hi, -1")
if PAD:
    a("s_waitcnt vmcnt(0)")
    a.label("L_pad")
    a("s_memrealtime s[2:3]")
    a("s_waitcnt lgkmcnt(0)")
    a("s_sub_u32 s2, s2, s62")
    a(f"s_cmp_lt_u32 s2, {PAD}")
    a("s_cbranch_scc1 L_pad")
if DIAG:
    a("s_memtime s[68:69]")
    a("s_waitcnt vmcnt(0)")
    a("s_memtime s[70:71]")
    a("s_memrealtime s[2:3]")
    a.label("L_diag")
    a("s_waitcnt lgkmcnt(0)")
    a("s_mov_b32 s40, s14"); a("s_mov_b32 s41, s15")
    a("s_mov_b32 s42, 0x1000000"); a("s_mov_b32 s43, 0x20000")
    a("v_mov_b32 v1, 0")
    for i in range(19):
        a(f"v_writelane_b32 v1, s{sSTAMP+2*i}, {i}")
    a("v_writelane_b32 v1, s62, 30")
    a("v_writelane_b32 v1, s2, 31")
    a("s_getreg_b32 s4, hwreg(HW_REG_XCC_ID)")
    a("s_getreg_b32 s5, hwreg(HW_REG_HW_ID)")
    a("v_writelane_b32 v1, s4, 32")
    a("v_writelane_b32 v1, s5, 33")
    a("s_lshl_b32 s4, s57, 3")
    a(f"s_add_u32 s4, s4, s{sW}")
    a("s_lshl_b32 s4, s4, 8")
    a("v_mbcnt_lo_u32_b32 v2, -1, 0")
    a("v_mbcnt_hi_u32_b32 v2, -1, v2")
    a("v_lshlrev_b32 v2, 2, v2")
    a("buffer_store_dword v1, v2, s[40:43], s4 offen")
a.label("L_end")
a("s_endpgm")

out += a.text()
out += f""".section .rodata,"a"
.p2align 6
.amdhsa_kernel {NAME}
  .amdhsa_next_free_vgpr 256
  .amdhsa_next_free_sgpr 102
  .amdhsa_accum_offset 256
  .amdhsa_group_segment_fixed_size 0
  .amdhsa_kernarg_size 56
  .amdhsa_user_sgpr_count 2
  .amdhsa_user_sgpr_kernarg_segment_ptr 1
  .amdhsa_system_sgpr_workgroup_id_x 1
  .amdhsa_float_denorm_mode_32 3
.end_amdhsa_kernel
"""
sys.stdout.write(out)
sys.stderr.write(f"code bytes ~{a.off}, align nops {a.nmis}\n")
```

```python
import re

INLINE_F = {"0.5","-0.5","1.0","-1.0","2.0","-2.0","4.0","-4.0"}
def _is_literal(tok):
    tok = tok.strip()
    if tok in INLINE_F: return False
    try:
        v = int(tok, 0)
    except ValueError:
        return tok.startswith("L_")
    return not (-16 <= v <= 64)

VOP3_ONLY = ("v_fma_f32","v_cvt_pk_bf16_f32","v_lshl_add_u32","v_mad_u32_u24","v_mul_lo_u32","v_add3_u32","v_lshl_or_b32",
             "v_and_or_b32","v_or3_b32","v_bfe_u32","v_add_lshl_u32","v_perm_b32","v_mfma_","v_pk_","v_fma_mix","v_accvgpr","v_readlane","v_writelane","v_xad_u32","v_bfi_b32","v_mad_i32_i24","v_mul_hi_u32","v_mbcnt")
SOPK = ("s_movk_i32","s_addk_i32","s_mulk_i32","s_cmpk_","s_getreg_b32","s_setreg_b32")
SOPP = ("s_nop","s_endpgm","s_branch","s_cbranch","s_barrier","s_waitcnt","s_setprio","s_sleep")

def isize(line):
    s = line.split(";")[0].strip()
    if not s or s.endswith(":") or s.startswith("."): return 0
    mn, _, rest = s.partition(" ")
    ops = [o.strip() for o in rest.split(",")] if rest else []
    if mn.startswith(("buffer_","global_","ds_","flat_")): return 8
    if mn.startswith(("s_load","s_memtime","s_memrealtime","s_buffer_load")): return 8
    if mn.startswith(SOPP) or mn.startswith(SOPK): return 4
    if mn.startswith("s_"):
        return 8 if any(_is_literal(o.split()[0]) for o in ops if o) else 4
    if mn.startswith("v_"):
        if mn.endswith("_e64") or mn.startswith(VOP3_ONLY): return 8
        if any(o.startswith("-") and not o[1:2].isdigit() for o in ops): return 8
        return 8 if any(_is_literal(o.split()[0]) for o in ops if o) else 4
    raise ValueError("unknown size: " + line)

class Asm:
    def __init__(self):
        self.lines = []
        self.off = 0
        self.align8 = True
        self.vm = []
        self.nmis = 0
        self.ev = []
    def raw(self, s):
        self.lines.append(s)
    def label(self, name, align=None):
        if align:
            while self.off % align:
                self._emit("s_nop 0")
        self.lines.append(name + ":")
    def _emit(self, s):
        self.lines.append("    " + s)
        self.off += isize(s)
    def __call__(self, s, tag=None):
        n = isize(s)
        if self.align8 and n == 8 and self.off % 8 == 4:
            j = len(self.lines) - 1
            prev = self.lines[j].strip()
            mn = prev.split(" ")[0]
            if prev and not prev.endswith(":") and mn.startswith("v_") and isize(prev) == 4 and not mn.endswith(("_e32","_e64")) and not mn.startswith(("v_permlane","v_readfirstlane","v_nop")):
                self.lines[j] = "    " + prev.replace(mn, mn + "_e64", 1)
                self.off += 4
            else:
                self._emit("s_nop 0"); self.nmis += 1
        self._emit(s)
        mn = s.split(" ")[0]
        if mn.startswith(("buffer_","global_")):
            self.vm.append(tag)
            self.ev.append(("I", tag))
    def wait_vm(self, pred, extra=""):
        last = -1
        for i, t in enumerate(self.vm):
            if pred(t): last = i
        if last < 0:
            if extra: self("s_waitcnt " + extra)
            self.ev.append(("N", pred))
            return None
        n = len(self.vm) - 1 - last
        assert n <= 63, n
        self(f"s_waitcnt vmcnt({n}) {extra}".strip())
        self.vm = self.vm[last+1:]
        self.ev.append(("W", n))
        self.ev.append(("N", pred))
        return n
    def text(self):
        return "\n".join(self.lines) + "\n"

def replay(sections):
    out = []
    for ev, sh in sections:
        for e in ev:
            if e[0] == "I":
                t = e[1]
                if t and t[0] == "A": t = ("A", t[1] + sh) + t[2:]
                out.append(t)
            elif e[0] == "W":
                if len(out) > e[1]: out = out[len(out) - e[1]:] if e[1] else []
            else:
                for t in out:
                    tt = ("A", t[1] - sh) + t[2:] if t and t[0] == "A" else t
                    assert not e[1](tt), ("unsatisfied need", t, sh)
        assert len(out) <= 63, len(out)
    return True
```

```python
import sys
from asmb import Asm, replay

P = dict(MAP=0, DIAG=0, NOMFMA=0, NODEQ=0, NOA=0, NOB=0, NOSTORE=0, NOREAD=0, NOWR=0, PRIO=1, RD0=0, RDS=1,
         PF=1, PAD=0, SAME=0, PPRIO=0, LEAD=1, STFLAG="", BFLAG="", AFLAG="", EPI=4, VSP=6, WPOS='2,6,10,14', B1PRE=8, WFORM=128, AD=2, PIPEW=0, BFIRST=0, AVG=0, SCHED='', PK=0, FINE='', WVM=1,
         NAME="standalone__weight_only_int_quip_2__prompt_kernel")
for a in sys.argv[1:]:
    k, v = a.split("=")
    assert k in P, k
    P[k] = int(v) if v.lstrip("-").isdigit() else v
globals().update(P)

M, K, N = 2048, 1024, 3584
NST = 16
A_SLOT = 32768
NA = AD + 1
B_BASE = NA * A_SLOT
B_SLOT = 16384
T_BASE = B_BASE + 2*B_SLOT
LDS_BYTES = T_BASE + 7168
EP_RS = 240

def order(phi, d):
    o = list(range(16))
    if d:
        t = phi
        while t + d < 16:
            seg = o[t:t+d+1]
            o[t:t+d+1] = [seg[-1]] + seg[:-1]
            t += 4
    return o
def packed(o):
    v = 0
    for i, s in enumerate(o): v |= s << (4*i)
    return v & 0xffffffff, v >> 32

a = Asm()
sX, sQ, sS, sZ, sO, sC, sD = 16, 20, 24, 28, 32, 36, 40
sW, sMT, sNT, sP = 44, 45, 46, 47
sT0, sT1, sT2, sT3 = 48, 49, 50, 51
sKA, sKA2, sKB, sM0B, sMASK = 52, 53, 54, 55, 56
sWG = 57
sORD = 58
sSIG, sCNT = 60, 61
sRT0 = 62
sTM = 64
sAQ = 68
sSC0 = 70
sASL = 71
sT00 = 66
def srd(n): return f"s[{n}:{n+3}]"
vST = 250
def stamp_at(lane):
    if DIAG: a(f"s_memtime s[{sTM}:{sTM+1}]")
def stamp_commit(lane):
    if DIAG: a(f"v_writelane_b32 v{vST}, s{sTM}, {lane}")
def stamp_now(lane):
    if DIAG:
        a(f"s_memtime s[{sTM}:{sTM+1}]"); a("s_waitcnt lgkmcnt(0)"); a(f"v_writelane_b32 v{vST}, s{sTM}, {lane}")

hdr = open("standalone__weight_only_int_quip_2__prompt.s.ref").read().split("; Override launch")[0]
out = hdr
out += f"; @launch grid=(256,1,1) block=(512,1,1) lds={LDS_BYTES}\n"
out += f""".amdgcn_target "amdgcn-amd-amdhsa--gfx950"
.text
.globl {NAME}
.p2align 8
.type {NAME},@function
{NAME}:
"""

a("s_load_dwordx4 s[4:7], s[0:1], 0")
a("s_load_dwordx4 s[8:11], s[0:1], 16")
a("s_load_dwordx2 s[12:13], s[0:1], 32")
a("s_cmp_ge_u32 s2, 256")
a("s_cbranch_scc1 L_end")
if DIAG:
    a("s_load_dwordx2 s[14:15], s[0:1], 48")
    a(f"s_memrealtime s[{sRT0}:{sRT0+1}]")
    a(f"s_memtime s[{sT00}:{sT00+1}]")
    a(f"s_mov_b32 s{sWG}, s2")
    a(f"v_mov_b32 v{vST}, 0")
if PAD: a(f"s_memrealtime s[{sRT0}:{sRT0+1}]")
a("v_lshrrev_b32 v1, 6, v0")
a("v_and_b32 v0, 63, v0")
a(f"s_and_b32 s{sT0}, s2, 7")
a(f"v_readfirstlane_b32 s{sW}, v1")
a(f"s_lshr_b32 s{sT1}, s2, 3")
if MAP == 0:
    a(f"s_and_b32 s{sT2}, s{sT1}, 3")
    a(f"s_lshl_b32 s{sNT}, s{sT0}, 2")
    a(f"s_add_u32 s{sNT}, s{sNT}, s{sT2}")
    a(f"s_lshr_b32 s{sMT}, s{sT1}, 2")
elif MAP == 1:
    a(f"s_and_b32 s{sT2}, s{sT0}, 1")
    a(f"s_lshl_b32 s{sT2}, s{sT2}, 2")
    a(f"s_and_b32 s{sMT}, s{sT1}, 3")
    a(f"s_add_u32 s{sMT}, s{sMT}, s{sT2}")
    a(f"s_lshr_b32 s{sT2}, s{sT0}, 1")
    a(f"s_lshl_b32 s{sT2}, s{sT2}, 3")
    a(f"s_lshr_b32 s{sNT}, s{sT1}, 2")
    a(f"s_add_u32 s{sNT}, s{sNT}, s{sT2}")
if SAME:
    a(f"s_mov_b32 s{sMT}, 0"); a(f"s_mov_b32 s{sNT}, 0")
a(f"s_cmp_lt_u32 s{sW}, 4")
a("s_cbranch_scc1 L_consumer")
if PPRIO: a(f"s_setprio {PPRIO}")

vS, vA, vWr, vSc = 1, 2, 7, 9
vT = 10
vSf, vNZ, vP0, vRS, vB, vQ = 16, 20, 120, 40, 44, 52
def vP(b): return vP0 + 16*b
def Q(b, j, c=0): return vQ + 32*b + 4*j + c

a(f"s_sub_u32 s{sP}, s{sW}, 4")
a(f"s_add_u32 s{sT3}, s{sMT}, s{sNT}")
a(f"s_and_b32 s{sT3}, s{sT3}, 3")
lo, hi = packed(order(0, LEAD))
a(f"s_mov_b32 s{sORD}, {lo:#x}"); a(f"s_mov_b32 s{sORD+1}, {hi:#x}")
if LEAD:
    for phi in range(1, 4):
        lo, hi = packed(order(phi, LEAD))
        a(f"s_cmp_eq_u32 s{sT3}, {phi}")
        a(f"s_cmov_b32 s{sORD}, {lo:#x}"); a(f"s_cmov_b32 s{sORD+1}, {hi:#x}")
a(f"s_and_b32 s{sSIG}, s{sORD}, 15")
a(f"s_lshr_b64 s[{sORD}:{sORD+1}], s[{sORD}:{sORD+1}], 4")
a(f"v_mul_u32_u24 v{vT}, 147, v0")
a(f"v_lshrrev_b32 v{vT}, 11, v{vT}")
a(f"v_mul_u32_u24 v{vT+1}, 14, v{vT}")
a(f"v_sub_u32 v{vT+1}, v0, v{vT+1}")
a(f"v_mul_u32_u24 v{vT}, 7168, v{vT}")
a(f"v_lshl_add_u32 v{vS}, v{vT+1}, 4, v{vT}")
a(f"s_mul_i32 s{sT0}, s{sP}, {4*7168}")
a(f"s_mul_i32 s{sT1}, s{sNT}, 224")
a(f"s_add_u32 s{sT0}, s{sT0}, s{sT1}")
a(f"s_mul_i32 s{sT2}, s{sP}, 896")
a(f"s_add_u32 s{sT2}, s{sT2}, {T_BASE}")
a(f"s_mov_b32 s{sS+2}, {16*N*2}")
a(f"s_mov_b32 s{sS+3}, 0x20000")
a(f"s_mov_b32 s{sZ+2}, {16*N*2}")
a(f"s_mov_b32 s{sZ+3}, 0x20000")
a(f"s_mov_b32 s{sQ+2}, {K*N*4}")
a(f"s_mov_b32 s{sQ+3}, 0x20000")
a(f"s_mov_b32 s{sX+2}, {M*K*2}")
a(f"s_mov_b32 s{sX+3}, 0x20000")
a(f"v_lshrrev_b32 v{vT}, 5, v0")
a(f"v_and_b32 v{vT+1}, 31, v0")
a(f"s_lshl_b32 s{sT3}, s{sP}, 1")
a(f"v_add_u32 v{vT+2}, s{sT3}, v{vT}")
a(f"v_mul_u32_u24 v{vT+3}, {8*N*4}, v{vT+2}")
a(f"s_mul_i32 s{sT1}, s{sNT}, 448")
a(f"v_lshl_add_u32 v{vT+3}, v{vT+1}, 4, v{vT+3}")
a(f"v_add_u32 v{vT+3}, s{sT1}, v{vT+3}")
a(f"v_cmp_gt_u32 vcc, 28, v{vT+1}")
a(f"v_mov_b32 v{vT+4}, 0x7f000000")
a(f"s_mul_i32 s{sKB}, s{sSIG}, {64*N*4}")
a(f"s_mov_b32 m0, s{sT2}")
a(f"v_cndmask_b32 v{vB}, v{vT+4}, v{vT+3}, vcc")
for j in range(1, 8):
    a(f"v_add_u32 v{vB+j}, {j*N*4}, v{vB}")
a("s_waitcnt lgkmcnt(0)")
a(f"s_mov_b32 s{sS}, s8");  a(f"s_mov_b32 s{sS+1}, s9")
a(f"s_mov_b32 s{sZ}, s10"); a(f"s_mov_b32 s{sZ+1}, s11")
a(f"s_mov_b32 s{sQ}, s6");  a(f"s_mov_b32 s{sQ+1}, s7")
a("s_mov_b32 exec_hi, 0x00ffffff")
a(f"buffer_load_dwordx4 v{vS}, {srd(sS)}, s{sT0} offen lds", tag=("S",))
a(f"s_add_u32 m0, s{sT2}, 3584")
a(f"s_mov_b32 s{sX}, s4");  a(f"s_mov_b32 s{sX+1}, s5")
a(f"buffer_load_dwordx4 v{vS}, {srd(sZ)}, s{sT0} offen lds", tag=("S",))
a("s_mov_b32 exec_hi, -1")

def loadB(b, j):
    if NOB: return
    a(f"buffer_load_dwordx4 v[{Q(b,j)}:{Q(b,j)+3}], v{vB+j}, {srd(sQ)}, s{sKB} offen {BFLAG}".rstrip(), tag=("B", b, j))
def loadA(slot, i):
    if NOA: return
    so = sKA if i < 4 else sKA2
    off = (i % 4) * 1024
    if AVG:
        a(f"buffer_load_dwordx4 v[{160+4*i}:{163+4*i}], v{vA+i%4}, {srd(sX)}, s{so} offen" + (f" offset:{off}" if off else ""), tag=("A", slot, i))
        return
    a(f"buffer_load_dwordx4 v{vA+i%4}, {srd(sX)}, s{so} offen" + (f" offset:{off}" if off else "") + f" {AFLAG} lds".replace("  ", " "), tag=("A", slot, i))

LAG = 2 + PIPEW - AD
for j in range(8): loadB(0, j)
a(f"s_mul_i32 s{sSC0}, s{sSIG}, 224")
a(f"s_lshl_b32 s{sAQ}, s{sSIG}, 7")
if PIPEW:
    a(f"s_and_b32 s{sSIG}, s{sORD}, 15")
    a(f"s_lshr_b64 s[{sORD}:{sORD+1}], s[{sORD}:{sORD+1}], 4")
    a(f"s_mul_i32 s{sKB}, s{sSIG}, {64*N*4}")
    a(f"s_lshl_b32 s{sAQ+1}, s{sSIG}, 7")
a(f"s_lshl_b32 s{sT0}, s{sMT}, 8")
a(f"s_lshl_b32 s{sT1}, s{sP}, 6")
a(f"s_add_u32 s{sT0}, s{sT0}, s{sT1}")
a(f"s_lshl_b32 s{sT0}, s{sT0}, 11")
a(f"s_lshl_b32 s{sM0B}, s{sP}, 13")
a(f"v_lshrrev_b32 v{vT}, 3, v0")
a(f"v_lshlrev_b32 v{vT}, 11, v{vT}")
a(f"v_add_u32 v{vT}, s{sT0}, v{vT}")
a(f"v_and_b32 v{vT+1}, 7, v0")
a(f"v_lshrrev_b32 v{vT+2}, 4, v0")
a(f"v_xor_b32 v{vT+1}, v{vT+1}, v{vT+2}")
a(f"v_lshl_add_u32 v{vA}, v{vT+1}, 4, v{vT}")
a(f"v_xor_b32 v{vA+1}, 64, v{vA}")
a(f"v_add_u32 v{vA+1}, 15360, v{vA+1}")
a(f"v_add_u32 v{vA+2}, 30720, v{vA}")
a(f"v_add_u32 v{vA+3}, 30720, v{vA+1}")
a(f"s_mov_b32 s{sASL}, s{sM0B}")
def next_aslot():
    a(f"s_add_u32 s{sASL}, s{sASL}, {A_SLOT}")
    a(f"s_cmp_ge_u32 s{sASL}, {NA*A_SLOT}")
    a(f"s_cselect_b32 s{sT1}, {NA*A_SLOT}, 0")
    a(f"s_sub_u32 s{sASL}, s{sASL}, s{sT1}")
if AD == 2:
    a(f"s_mov_b32 s{sKA}, s{sAQ}")
    a(f"s_mov_b32 m0, s{sASL}")
    a(f"s_add_u32 s{sKA2}, s{sKA}, 65536")
    for i_ in range(4): loadA(0, i_)
    a(f"s_add_u32 m0, s{sASL}, 4096")
    a("s_nop 0")
    for i_ in range(4, 8): loadA(0, i_)
    next_aslot()
    if PIPEW: a(f"s_mov_b32 s{sAQ}, s{sAQ+1}")
if PIPEW:
    for j in range(B1PRE): loadB(1, j)
a(f"v_lshrrev_b32 v{vT}, 5, v0")
a(f"v_add_u32 v{vT}, s{sT3}, v{vT}")
a(f"v_lshrrev_b32 v{vT+1}, 2, v{vT}")
a(f"v_mul_u32_u24 v{vT+1}, 7, v{vT+1}")
a(f"v_and_b32 v{vT+2}, 31, v0")
a(f"v_lshrrev_b32 v{vT+3}, 2, v{vT+2}")
a(f"v_add_u32 v{vT+1}, v{vT+1}, v{vT+3}")
a(f"v_cmp_gt_u32 vcc, 28, v{vT+2}")
a(f"v_and_b32 v{vT}, 3, v{vT}")
a(f"v_and_b32 v{vT+3}, 1, v{vT+3}")
a(f"v_cndmask_b32 v{vT+1}, 14, v{vT+1}, vcc")
a(f"v_lshlrev_b32 v{vT+1}, 10, v{vT+1}")
a(f"v_lshl_add_u32 v{vT+1}, v{vT}, 8, v{vT+1}")
a(f"v_and_b32 v{vT}, 3, v{vT+2}")
a(f"v_lshl_add_u32 v{vT+1}, v{vT}, 4, v{vT+1}")
a(f"v_lshl_add_u32 v{vT+1}, v{vT+3}, 6, v{vT+1}")
a(f"v_add_u32 v{vWr}, {B_BASE}, v{vT+1}")
a(f"v_xor_b32 v{vWr+1}, 64, v{vWr}")
a(f"v_min_u32 v{vT+2}, 27, v{vT+2}")
a(f"v_lshlrev_b32 v{vSc}, 3, v{vT+2}")
a(f"v_add_u32 v{vSc}, {T_BASE}, v{vSc}")
a(f"s_mov_b32 s{sMASK}, 0xffff0000")
a(f"s_mov_b32 s{sCNT}, 0")
a(f"v_add_u32 v{vT}, s{sSC0}, v{vSc}")
a.wait_vm(lambda t: t[0] == "S")
a("s_barrier")
stamp_at(0)
a(f"ds_read_b64 v[{vRS}:{vRS+1}], v{vT}")
a(f"ds_read_b64 v[{vRS+2}:{vRS+3}], v{vT} offset:3584")
a("s_waitcnt lgkmcnt(0)")
stamp_commit(1)

def prep():
    r = vRS
    L = []
    L.append(f"v_lshlrev_b32 v{vSf}, 16, v{r}")
    L.append(f"v_and_b32 v{vSf+1}, s{sMASK}, v{r}")
    L.append(f"v_lshlrev_b32 v{vSf+2}, 16, v{r+1}")
    L.append(f"v_and_b32 v{vSf+3}, s{sMASK}, v{r+1}")
    L.append(f"v_lshlrev_b32 v{vNZ}, 16, v{r+2}")
    L.append(f"v_and_b32 v{vNZ+1}, s{sMASK}, v{r+2}")
    L.append(f"v_lshlrev_b32 v{vNZ+2}, 16, v{r+3}")
    L.append(f"v_and_b32 v{vNZ+3}, s{sMASK}, v{r+3}")
    for c in range(4):
        L.append(f"v_mul_f32_e64 v{vNZ+c}, -v{vNZ+c}, v{vSf+c}")
    return L
def deq_group(b, jj):
    L = []
    for c in range(4):
        L.append(f"v_cvt_f32_i32 v{Q(b,2*jj,c)}, v{Q(b,2*jj,c)}")
        L.append(f"v_cvt_f32_i32 v{Q(b,2*jj+1,c)}, v{Q(b,2*jj+1,c)}")
    if PK:
        for c in (0, 2):
            for r in (2*jj, 2*jj+1):
                L.append(f"v_pk_fma_f32 v[{Q(b,r,c)}:{Q(b,r,c)+1}], v[{Q(b,r,c)}:{Q(b,r,c)+1}], v[{vSf+c}:{vSf+c+1}], v[{vNZ+c}:{vNZ+c+1}]")
    else:
      for c in range(4):
        L.append(f"v_fma_f32 v{Q(b,2*jj,c)}, v{Q(b,2*jj,c)}, v{vSf+c}, v{vNZ+c}")
        L.append(f"v_fma_f32 v{Q(b,2*jj+1,c)}, v{Q(b,2*jj+1,c)}, v{vSf+c}, v{vNZ+c}")
    for c in range(4):
        L.append(f"v_cvt_pk_bf16_f32 v{vP(b)+4*c+jj}, v{Q(b,2*jj,c)}, v{Q(b,2*jj+1,c)}")
    return L

def read_scales():
    a(f"s_mul_i32 s{sT0}, s{sSIG}, 224")
    a(f"v_add_u32 v{vT}, s{sT0}, v{vSc}")
    a(f"ds_read_b64 v[{vRS}:{vRS+1}], v{vT}")
    a(f"ds_read_b64 v[{vRS+2}:{vRS+3}], v{vT} offset:3584")

inloop = [False]
sFINE = 72
def producer_iter(sl, pro=False, cmp_=None):
    par = (sl + 1) % 2
    doA = not pro and sl + AD < NST
    doB = sl + 2 + PIPEW < NST
    doDeq = sl + 1 + PIPEW < NST
    db = (sl + 1 + PIPEW) % 2
    lb = 1 - db
    wb = par
    vm = []
    if doB and not pro:
        a(f"s_and_b32 s{sSIG}, s{sORD}, 15")
    if doA:
        if LAG == 0:   a(f"s_lshl_b32 s{sKA}, s{sSIG}, 7")
        elif LAG == 1: a(f"s_mov_b32 s{sKA}, s{sAQ}")
        else:          a(f"s_mov_b32 s{sKA}, s{sAQ+par}")
        a(f"s_mov_b32 m0, s{sASL}")
        vm += [("A", i) for i in range(8)]
    if doB: vm += [("B", j) for j in range(B1PRE if pro else 0, 8)]
    if BFIRST and doA and doB: vm = vm[8:] + vm[:8]
    k = [0]
    def setB():
        a(f"s_lshr_b64 s[{sORD}:{sORD+1}], s[{sORD}:{sORD+1}], 4")
        a(f"s_mul_i32 s{sKB}, s{sSIG}, {64*N*4}")
        if LAG: a(f"s_lshl_b32 s{sAQ + (par if LAG == 2 else 0)}, s{sSIG}, 7")
    if BFIRST and doB and not pro: setB()
    def emit_vm():
        kind, i = vm[k[0]]; k[0] += 1
        if kind == "A":
            if i == 4:
                a(f"s_add_u32 m0, s{sASL}, 4096")
                a(f"s_add_u32 s{sKA2}, s{sKA}, 65536")
            loadA(sl + AD, i)
            if i == 7: next_aslot()
        else:
            loadB(lb, i)
    def writes(cs):
        if NOWR: return
        p = vP(wb)
        for c in cs:
            off = par * B_SLOT + (c >> 1) * 128
            if WFORM == 128:
                a(f"ds_write_b128 v{vWr+(c&1)}, v[{p+4*c}:{p+4*c+3}]" + (f" offset:{off}" if off else ""))
            elif WFORM == 64:
                a(f"ds_write_b64 v{vWr+(c&1)}, v[{p+4*c}:{p+4*c+1}] offset:{off}")
                a(f"ds_write_b64 v{vWr+(c&1)}, v[{p+4*c+2}:{p+4*c+3}] offset:{off+8}")
    nv = [0]
    done_w = set()
    if SCHED:
        vpos = []
        for item in str(SCHED).split(","):
            cnt_, pos_ = item.split("@"); vpos += [int(pos_)] * int(cnt_)
        assert len(vpos) == 16
    else:
        vpos = [VSP*i for i in range(16)]
    fine = [int(x) for x in str(FINE).split(",")] if FINE != '' and inloop[0] else []
    def valu(L):
        for x in L:
            if nv[0] in fine:
                i_ = sFINE + 2*(fine.index(nv[0]) + (len(fine)+1)*par)
                a(f"s_memtime s[{i_}:{i_+1}]")
            while k[0] < len(vm) and nv[0] >= vpos[k[0]] and nv[0] % 2 == 0: emit_vm()
            if PIPEW and not pro and nv[0] in WAT:
                writes(WAT[nv[0]]); done_w.update(WAT[nv[0]])
            if not NODEQ: a(x)
            nv[0] += 1
    if doDeq:
        valu(prep())
        if doB and not pro and not BFIRST: setB()
        if doB: read_scales()
        for jj in range(4):
            while k[0] < len(vm) and nv[0] >= vpos[k[0]]: emit_vm()
            a.wait_vm(lambda t, jj=jj, db=db: t[0] == "B" and t[1] == db and t[2] <= 2*jj+1)
            valu(deq_group(db, jj))
    if not pro:
        for c in range(4):
            if c not in done_w:
                writes([c])
                if k[0] < len(vm) and WVM: emit_vm()
    while k[0] < len(vm): emit_vm()
    if pro:
        a("s_waitcnt lgkmcnt(0)")
        return
    if fine:
        i_ = sFINE + 2*(len(fine) + (len(fine)+1)*par)
        a(f"s_memtime s[{i_}:{i_+1}]")
    a(f"s_add_u32 s{sCNT}, s{sCNT}, 1")
    if DIAG: a(f"s_add_u32 m0, s{sCNT}, 1")
    if cmp_: a(cmp_)
    a.wait_vm(lambda t, sl=sl: t[0] == "A" and t[1] <= sl + 1, extra="lgkmcnt(0)")
    if DIAG: a(f"v_writelane_b32 v{vST}, s{sTM}, m0")
    a("s_barrier")
    if DIAG: a(f"s_memtime s[{sTM}:{sTM+1}]")

WAT = {}
for c, pos in enumerate(str(WPOS).split(",")): WAT.setdefault(int(pos), []).append(c)
if PIPEW: producer_iter(-2, pro=True)
last_u = min(NST - 1 - AD, NST - 3 - PIPEW)
ntrip = (last_u + 2) // 2
if DIAG: a(f"s_memtime s[{sTM}:{sTM+1}]")
a.label("L_ploop", align=64)
ev_pro = a.ev; a.ev = []
save = (list(a.lines), a.off, a.nmis)
producer_iter(-1); producer_iter(0)
steady = [(t[0], t[1] - 2) + t[2:] if t[0] == "A" else t for t in a.vm]
a.lines, a.off, a.nmis = save
a.vm = steady; a.ev = []
inloop[0] = True
producer_iter(-1)
producer_iter(0, cmp_=f"s_cmp_lt_u32 s{sCNT}, {2*ntrip}")
a("s_cbranch_scc1 L_ploop")
inloop[0] = False
ev_loop = a.ev; a.ev = []
a.vm = [(t[0], t[1] + 2*ntrip - 2) + t[2:] if t[0] == "A" else t for t in a.vm]
for sl in range(2*ntrip - 1, NST - 1):
    producer_iter(sl)
replay([(ev_pro, 0)] + [(ev_loop, 2*t) for t in range(ntrip)] + [(a.ev, 0)])
if DIAG:
    a("s_waitcnt lgkmcnt(0)")
    a(f"v_writelane_b32 v{vST}, s{sTM}, 18")
    a("s_memrealtime s[2:3]")
    a("s_branch L_diag")
else:
    a("s_endpgm")

vW = [112, 156]; vXf = [140, 184]
vXb0, vXb1, vX0, vX1, vWe, vWo = 200, 201, 202, 203, 204, 205
vEw, vEr, vOut, vL, vU = 206, 207, 208, 209, 210
def acc(t, m): return (t*4 + m) * 4
a.vm = []
a.label("L_consumer", align=8)
if PF:
    a("s_getpc_b64 s[36:37]")
    a.raw("L_pc:")
    a(f"s_sub_u32 s36, s36, L_pc-{NAME}")
    a(f"s_subb_u32 s37, s37, 0")
    a(f"s_mov_b32 s38, L_end-{NAME}")
    a(f"s_mov_b32 s39, 0x20000")
    a(f"s_lshr_b32 s{sT0}, s2, 3")
    a(f"s_lshl_b32 s{sT0}, s{sT0}, 8")
    a(f"s_cmp_lg_u32 s{sW}, 0")
    a(f"s_cmov_b32 s{sT0}, 0x7e000000")
    a(f"v_lshlrev_b32 v{vU}, 7, v0")
    a("s_mov_b64 exec, 3")
    a(f"buffer_load_dword v215, v{vU}, {srd(sC)}, s{sT0} offen")
    a("s_mov_b64 exec, -1")
a(f"s_setprio {PRIO}")
a(f"v_mov_b32 v{vL}, v0")
a(f"v_and_b32 v{vU}, 15, v{vL}")
a(f"v_lshrrev_b32 v{vU+1}, 4, v{vL}")
a(f"s_lshl_b32 s{sT0}, s{sW}, 13")
a(f"v_lshrrev_b32 v{vU+2}, 1, v{vU}")
a(f"v_xor_b32 v{vU+2}, v{vU+2}, v{vU+1}")
a(f"v_lshlrev_b32 v{vU+2}, 4, v{vU+2}")
a(f"v_lshl_add_u32 v{vU+2}, v{vU}, 7, v{vU+2}")
a(f"v_add_u32 v{vX0}, s{sT0}, v{vU+2}")
a(f"v_xor_b32 v{vX1}, 64, v{vX0}")
if NA != 2:
    a(f"v_mov_b32 v{vXb0}, v{vX0}")
    a(f"v_mov_b32 v{vXb1}, v{vX1}")
    a(f"s_mov_b32 s{sASL}, 0")
a(f"v_and_b32 v{vU+2}, 3, v{vU}")
a(f"v_lshrrev_b32 v{vU+3}, 2, v{vU}")
a(f"v_lshl_add_u32 v{vU+2}, v{vU+2}, 2, v{vU+3}")
a(f"v_lshlrev_b32 v{vU+2}, 4, v{vU+2}")
a(f"v_lshl_add_u32 v{vU+2}, v{vU+1}, 8, v{vU+2}")
a(f"v_add_u32 v{vWe}, {B_BASE}, v{vU+2}")
a(f"v_xor_b32 v{vWo}, 64, v{vWe}")
a(f"v_mul_u32_u24 v{vU+2}, {EP_RS}, v{vU}")
a(f"v_lshl_add_u32 v{vU+2}, v{vU+1}, 3, v{vU+2}")
a(f"v_add_u32 v{vEw}, s{sT0}, v{vU+2}")
a(f"v_mul_u32_u24 v{vU}, 147, v{vL}")
a(f"v_lshrrev_b32 v{vU}, 11, v{vU}")
a(f"v_mul_u32_u24 v{vU+1}, 14, v{vU}")
a(f"v_sub_u32 v{vU+1}, v{vL}, v{vU+1}")
a(f"v_lshlrev_b32 v{vU+1}, 4, v{vU+1}")
a(f"v_mul_u32_u24 v{vU+2}, {EP_RS}, v{vU}")
a(f"v_add_u32 v{vU+2}, v{vU+2}, v{vU+1}")
a(f"v_add_u32 v{vEr}, s{sT0}, v{vU+2}")
a(f"s_lshl_b32 s{sT1}, s{sMT}, 8")
a(f"s_lshl_b32 s{sT2}, s{sW}, 6")
a(f"s_add_u32 s{sT1}, s{sT1}, s{sT2}")
a(f"s_mul_i32 s{sT1}, s{sT1}, {N*2}")
a(f"s_mul_i32 s{sT2}, s{sNT}, 224")
a(f"s_add_u32 s{sT1}, s{sT1}, s{sT2}")
a(f"v_mul_u32_u24 v{vU+2}, {N*2}, v{vU}")
a(f"v_add3_u32 v{vOut}, v{vU+2}, v{vU+1}, s{sT1}")
a(f"v_cmp_gt_u32 vcc, 56, v{vL}")
a(f"v_mov_b32 v{vU}, 0x7f000000")
a(f"s_mov_b32 s{sCNT}, 0")
a(f"s_mov_b32 s{sO+2}, {M*N*2}")
a(f"v_cndmask_b32 v{vOut}, v{vU}, v{vOut}, vcc")
a(f"s_mov_b32 s{sO+3}, 0x20000")
for i in range(112):
    a(f"v_mov_b32 v{i}, 0")
a("s_waitcnt lgkmcnt(0)")
a(f"s_mov_b32 s{sO}, s12"); a(f"s_mov_b32 s{sO+1}, s13")
a("s_barrier")
a("s_barrier")

def reads(h):
    L = []
    vx = vX0 if h == 0 else vX1
    order_ = [("W",0),("W",1),("X",0),("W",2),("X",1),("W",3),("X",2),("W",4),("X",3),("W",5),("W",6)]
    for kind, i in order_:
        if kind == "W":
            r = vW[h] + 4*i
            L.append(f"ds_read_b128 v[{r}:{r+3}], v{vWo if i & 1 else vWe} offset:{(h*7+i)*1024}")
        else:
            r = vXf[h] + 4*i
            L.append(f"ds_read_b128 v[{r}:{r+3}], v{vx}" + (f" offset:{i*2048}" if i else ""))
    return [] if NOREAD else L
def mfma(t, m, h):
    if NOMFMA: return
    c = acc(t, m)
    a(f"v_mfma_f32_16x16x32_bf16 v[{c}:{c+3}], v[{vW[h]+4*t}:{vW[h]+4*t+3}], v[{vXf[h]+4*m}:{vXf[h]+4*m+3}], v[{c}:{c+3}]")
def half(h, extra, order_=None):
    order_ = order_ or [(t, m) for t in range(7) for m in range(4)]
    for i, (t, m) in enumerate(order_):
        mfma(t, m, h)
        for s_ in extra.get(i, []): a(s_)
def spread(L, start, step):
    d = {}
    for k, s_ in enumerate(L):
        d.setdefault(start + (k * step) // 2, []).append(s_)
    return d
STEP = 2*RDS if RDS < 8 else RDS - 8

for s_ in reads(0): a(s_)
a.label("L_loop", align=64)
a("s_waitcnt lgkmcnt(0)")
ex0 = spread(reads(1), RD0, STEP)
if NA != 2:
    ex0.setdefault(24, []).extend([f"s_add_u32 s{sASL}, s{sASL}, {A_SLOT}", f"s_cmp_ge_u32 s{sASL}, {NA*A_SLOT}",
                                   f"s_cselect_b32 s{sT1}, {NA*A_SLOT}, 0", f"s_sub_u32 s{sASL}, s{sASL}, s{sT1}"])
half(0, ex0)
a("s_waitcnt lgkmcnt(0)")
a("s_barrier")
ex = {0: [f"v_xor_b32 v{vWe}, {B_SLOT}, v{vWe}", f"v_xor_b32 v{vWo}, {B_SLOT}, v{vWo}"],
      1: [f"v_xor_b32 v{vX0}, {A_SLOT}, v{vX0}", f"v_xor_b32 v{vX1}, {A_SLOT}, v{vX1}"]}
if NA != 2:
    ex[1] = [f"v_add_u32 v{vX0}, s{sASL}, v{vXb0}", f"v_add_u32 v{vX1}, s{sASL}, v{vXb1}"]
rd = spread(reads(0), RD0 + 1, STEP)
for k, v in rd.items(): ex.setdefault(k, []).extend(v)
ex.setdefault(24, []).extend([f"s_add_u32 s{sCNT}, s{sCNT}, 1", f"s_cmp_lt_u32 s{sCNT}, {NST-1}"])
half(1, ex)
a("s_cbranch_scc1 L_loop")
a("s_waitcnt lgkmcnt(0)")
half(0, spread(reads(1), RD0, STEP))
a("s_waitcnt lgkmcnt(0)")
stamp_now(1)

def ep_off(m): return (m & 1) * 4096 + (m >> 1) * A_SLOT
def RB(m, j): return [128 + 4*j, 216 + 4*j, 232 + 4*j, acc(j, 0)][m]
mo = [(t, m) for m in range(4) for t in range(7)]
q = []
for m in range(4):
    for t in range(7):
        c = acc(t, m); r = 112 + 2*((m*7 + t) % 8)
        p = 7*m + t + 8
        q.append((p, "v", f"v_cvt_pk_bf16_f32 v{r}, v{c}, v{c+1}"))
        q.append((p, "v", f"v_cvt_pk_bf16_f32 v{r+1}, v{c+2}, v{c+3}"))
        q.append((p, "d", f"ds_write_b64 v{vEw}, v[{r}:{r+1}] offset:{ep_off(m) + t*32}"))
        if m >= 1 and t in (2, 3, 4, 5):
            q.append((p, "st", (m-1, t-2)))
    for j in range(4):
        q.append((p, ("rd", m, j), f"ds_read_b128 v[{RB(m,j)}:{RB(m,j)+3}], v{vEr} offset:{ep_off(m) + j*4*EP_RS}"))
for j in range(4): q.append((99, "st", (3, j)))
ds = []
def emit_item(it):
    global ds
    p, kind, x = it
    if kind == "st":
        m, j = x
        if ("rd", m, j) in ds:
            k = ds.index(("rd", m, j))
            n = len(ds) - 1 - k
            a(f"s_waitcnt lgkmcnt({min(n, 15)})")
            ds = ds[k+1:]
        if not NOSTORE:
            a(f"s_mov_b32 s{sT0 + (j & 1)}, {(16*m + 4*j) * N * 2}")
            a(f"buffer_store_dwordx4 v[{RB(m,j)}:{RB(m,j)+3}], v{vOut}, {srd(sO)}, s{sT0 + (j & 1)} offen {STFLAG}".rstrip())
    else:
        a(x)
        if kind != "v": ds.append(kind)
qi = 0
for i, (t, m) in enumerate(mo):
    mfma(t, m, 1)
    n = 0
    while qi < len(q) and q[qi][0] <= i and n < EPI:
        emit_item(q[qi]); qi += 1; n += 1
stamp_at(2)
if qi < len(q): a("s_nop 7")
while qi < len(q):
    emit_item(q[qi]); qi += 1
if PAD:
    a("s_waitcnt vmcnt(0)")
    a.label("L_pad")
    a("s_memrealtime s[2:3]")
    a("s_waitcnt lgkmcnt(0)")
    a(f"s_sub_u32 s2, s2, s{sRT0}")
    a(f"s_cmp_lt_u32 s2, {PAD}")
    a("s_cbranch_scc1 L_pad")
if DIAG:
    a("s_waitcnt lgkmcnt(0)")
    stamp_commit(2)
    stamp_now(3)
    a("s_waitcnt vmcnt(0)")
    stamp_now(4)
    a("s_memrealtime s[2:3]")
    a.label("L_diag")
    a("s_waitcnt lgkmcnt(0)")
    a("s_mov_b32 s40, s14"); a("s_mov_b32 s41, s15")
    a("s_mov_b32 s42, 0x1000000"); a("s_mov_b32 s43, 0x20000")
    a(f"v_writelane_b32 v{vST}, s{sT00}, 0")
    for i_ in range(15): a(f"v_writelane_b32 v{vST}, s{sFINE+2*i_}, {32+i_}")
    a(f"v_writelane_b32 v{vST}, s{sRT0}, 30")
    a(f"v_writelane_b32 v{vST}, s2, 31")
    a(f"s_lshl_b32 s4, s{sWG}, 3")
    a(f"s_add_u32 s4, s4, s{sW}")
    a("s_lshl_b32 s4, s4, 8")
    a("v_mbcnt_lo_u32_b32 v2, -1, 0")
    a("v_mbcnt_hi_u32_b32 v2, -1, v2")
    a("v_lshlrev_b32 v2, 2, v2")
    a(f"buffer_store_dword v{vST}, v2, s[40:43], s4 offen")
a.label("L_end")
a("s_endpgm")

out += a.text()
out += f""".section .rodata,"a"
.p2align 6
.amdhsa_kernel {NAME}
  .amdhsa_next_free_vgpr 256
  .amdhsa_next_free_sgpr 102
  .amdhsa_accum_offset 256
  .amdhsa_group_segment_fixed_size 0
  .amdhsa_kernarg_size 56
  .amdhsa_user_sgpr_count 2
  .amdhsa_user_sgpr_kernarg_segment_ptr 1
  .amdhsa_system_sgpr_workgroup_id_x 1
  .amdhsa_float_denorm_mode_32 3
.end_amdhsa_kernel
"""
sys.stdout.write(out)
sys.stderr.write(f"code bytes ~{a.off}, align nops {a.nmis}\n")
```

```python
import re

INLINE_F = {"0.5","-0.5","1.0","-1.0","2.0","-2.0","4.0","-4.0"}
def _is_literal(tok):
    tok = tok.strip()
    if tok in INLINE_F: return False
    try:
        v = int(tok, 0)
    except ValueError:
        return tok.startswith("L_")
    return not (-16 <= v <= 64)

VOP3_ONLY = ("v_fma_f32","v_cvt_pk_bf16_f32","v_lshl_add_u32","v_mad_u32_u24","v_mul_lo_u32","v_add3_u32","v_lshl_or_b32",
             "v_and_or_b32","v_or3_b32","v_bfe_u32","v_add_lshl_u32","v_perm_b32","v_mfma_","v_pk_","v_fma_mix","v_accvgpr","v_readlane","v_writelane","v_xad_u32","v_bfi_b32","v_mad_i32_i24","v_mul_hi_u32","v_mbcnt","v_max3")
SOPK = ("s_movk_i32","s_addk_i32","s_mulk_i32","s_cmpk_","s_getreg_b32","s_setreg_b32")
SOPP = ("s_nop","s_endpgm","s_branch","s_cbranch","s_barrier","s_waitcnt","s_setprio","s_sleep")

def isize(line):
    s = line.split(";")[0].strip()
    if not s or s.endswith(":") or s.startswith("."): return 0
    mn, _, rest = s.partition(" ")
    ops = [o.strip() for o in rest.split(",")] if rest else []
    if mn.startswith(("buffer_","global_","ds_","flat_")): return 8
    if mn.startswith(("s_load","s_memtime","s_memrealtime","s_buffer_load")): return 8
    if mn.startswith(SOPP) or mn.startswith(SOPK): return 4
    if mn.startswith("s_"):
        return 8 if any(_is_literal(o.split()[0]) for o in ops if o) else 4
    if mn.startswith("v_"):
        if mn.endswith("_e64") or mn.startswith(VOP3_ONLY): return 8
        if any(o.startswith("-") and not o[1:2].isdigit() for o in ops): return 8
        return 8 if any(_is_literal(o.split()[0]) for o in ops if o) else 4
    raise ValueError("unknown size: " + line)

class Asm:
    def __init__(self):
        self.lines = []
        self.off = 0
        self.align8 = True
        self.vm = []
        self.nmis = 0
        self.ev = []
    def raw(self, s):
        self.lines.append(s)
    def label(self, name, align=None):
        if align:
            while self.off % align:
                self._emit("s_nop 0")
        self.lines.append(name + ":")
    def _emit(self, s):
        self.lines.append("    " + s)
        self.off += isize(s)
    def __call__(self, s, tag=None):
        n = isize(s)
        if s.startswith("buffer_") and s.split()[-1] == "lds":
            prev = next((l.strip() for l in reversed(self.lines) if l.strip() and not l.strip().endswith(":")), "")
            if re.match(r"s_\w+ m0,", prev) and not (self.align8 and self.off % 8 == 4):
                self._emit("s_nop 0")
        if self.align8 and n == 8 and self.off % 8 == 4:
            j = len(self.lines) - 1
            prev = self.lines[j].strip()
            mn = prev.split(" ")[0]
            if prev and not prev.endswith(":") and mn.startswith("v_") and isize(prev) == 4 and not mn.endswith(("_e32","_e64")) and not mn.startswith(("v_permlane","v_readfirstlane","v_nop")):
                self.lines[j] = "    " + prev.replace(mn, mn + "_e64", 1)
                self.off += 4
            else:
                self._emit("s_nop 0"); self.nmis += 1
        self._emit(s)
        mn = s.split(" ")[0]
        if mn.startswith(("buffer_","global_")):
            self.vm.append(tag)
            self.ev.append(("I", tag))
    def wait_vm(self, pred, extra=""):
        last = -1
        for i, t in enumerate(self.vm):
            if pred(t): last = i
        if last < 0:
            if extra: self("s_waitcnt " + extra)
            self.ev.append(("N", pred))
            return None
        n = len(self.vm) - 1 - last
        assert n <= 63, n
        self(f"s_waitcnt vmcnt({n}) {extra}".strip())
        self.vm = self.vm[last+1:]
        self.ev.append(("W", n))
        self.ev.append(("N", pred))
        return n
    def text(self):
        return "\n".join(self.lines) + "\n"

def replay(sections):
    out = []
    for ev, sh in sections:
        for e in ev:
            if e[0] == "I":
                t = e[1]
                if t and t[0] == "A": t = ("A", t[1] + sh) + t[2:]
                out.append(t)
            elif e[0] == "W":
                if len(out) > e[1]: out = out[len(out) - e[1]:] if e[1] else []
            else:
                for t in out:
                    tt = ("A", t[1] - sh) + t[2:] if t and t[0] == "A" else t
                    assert not e[1](tt), ("unsatisfied need", t, sh)
        assert len(out) <= 63, len(out)
    return True
```
